```python
import torch

def _softmax(x, axis=-1):
    return torch.softmax(x, dim=axis)
def _gelu(x):
    return torch.nn.functional.gelu(x, approximate="tanh")
def _silu(x):
    return torch.nn.functional.silu(x)
def _sigmoid(x):
    return torch.sigmoid(x)
def _layernorm(x, axis=-1, eps=1e-5):
    m = x.mean(dim=axis, keepdim=True)
    v = x.var(dim=axis, keepdim=True, unbiased=False)
    return (x - m) / torch.sqrt(v + eps)
def _scatter_add(tgt, idx, src, axis=0):
    return tgt.clone().index_add_(axis, idx, src)
def _segment_sum(src, seg, n):
    out = torch.zeros((n,) + src.shape[1:], dtype=src.dtype)
    return out.index_add_(0, seg, src)
def _pad(x, pw):
    flat = tuple(v for pair in reversed(pw) for v in pair)
    return torch.nn.functional.pad(x, flat)

kernel_name = 'parallel_sum__ssm_conv_h3__dense_activation_silu__prompt'

def setup_inputs():

    _w = (lambda a: (lambda t: t.to(torch.bfloat16) if t.is_floating_point() else t)(torch.as_tensor(a)))
    def _A_setup():
        B, S, D = 1, 2048, 512
        ks = 4
        return {
            "q": _w((lambda *s: torch.randn(*s, dtype=torch.bfloat16) * 0.05)(B, S, D)),
            "k": _w((lambda *s: torch.randn(*s, dtype=torch.bfloat16) * 0.2)(B, S, D)),
            "v": _w((lambda *s: torch.randn(*s, dtype=torch.bfloat16) * 0.2)(B, S, D)),
            "shift_k": _w((lambda *s: torch.randn(*s, dtype=torch.bfloat16) * 0.2)(D, ks) * 0.5),
            "ssm_k": _w((lambda *s: torch.randn(*s, dtype=torch.bfloat16) * 0.8)(D, S) * (1.0 / S ** 0.5)),
            "ssm_D": _w((lambda *s: torch.randn(*s, dtype=torch.bfloat16) * 0.2)(D)),
        }
    _A_in = _A_setup()

    def _B_setup():
        B, S, D, F = 1, 2048, 512, 1376
        return {
            "x": _w((lambda *s: torch.randn(*s, dtype=torch.bfloat16) * 0.05)(B, S, D)),
            "w1": _w((lambda *s: torch.randn(*s, dtype=torch.bfloat16) * 0.8)(D, F) * (D ** -0.5)),
            "w2": _w((lambda *s: torch.randn(*s, dtype=torch.bfloat16) * 0.1)(F, D) * (F ** -0.5)),
        }
    _B_in = _B_setup()

    return {
        "A_q": _A_in["q"],
        "A_k": _A_in["k"],
        "A_v": _A_in["v"],
        "A_shift_k": _A_in["shift_k"],
        "A_ssm_k": _A_in["ssm_k"],
        "A_ssm_D": _A_in["ssm_D"],
        "B_x": _B_in["x"],
        "B_w1": _B_in["w1"],
        "B_w2": _B_in["w2"],
    }

def reference(A_q, A_k, A_v, A_shift_k, A_ssm_k, A_ssm_D, B_x, B_w1, B_w2):
    def _A_ref(q, k, v, shift_k, ssm_k, ssm_D):
        B, S, D = q.shape
        ks = shift_k.shape[-1]
        k_pad = _pad(k, ((0, 0), (ks - 1, 0), (0, 0)))
        k_shift = torch.zeros_like(k)
        for t in range(ks):
            k_shift = k_shift + k_pad[:, t:t + S, :] * shift_k[:, ks - 1 - t][None, None, :]
        kv = k_shift * v
        L = 2 * S
        kv_pad = _pad(kv, ((0, 0), (0, S), (0, 0)))
        kf_pad = _pad(ssm_k, ((0, 0), (0, S)))
        kv_f = (lambda x, axes=(-2,-1): torch.fft.rfft2(x.float(), dim=axes))(kv_pad[:, None, :, :], axes=(1, 2))
        kf_f = (lambda x, axes=(-2,-1): torch.fft.rfft2(x.float(), dim=axes))(kf_pad[:, None, :], axes=(1, 2))
        kf_f = (lambda x, *d: x.permute(*d))(kf_f, 1, 2, 0)
        y_f = kv_f * kf_f[None, :, :, :]
        y = (lambda x, s, axes=(-2,-1): torch.fft.irfft2(x, s=s, dim=axes).to(torch.bfloat16))(y_f, (1, L), axes=(1, 2))[:, 0, :S, :]
        y = y + kv * ssm_D[None, None, :]
        return q * y

    def _B_ref(x, w1, w2):
        h = torch.einsum("bsd,df->bsf", x, w1)
        h = _silu(h)
        out = torch.einsum("bsf,fd->bsd", h, w2)
        return out

    x = A_q
    xn = _layernorm(x, axis=-1)
    return x + _A_ref(xn, A_k, A_v, A_shift_k, A_ssm_k, A_ssm_D) + _B_ref(xn, B_w1, B_w2)
```

```python
import re

REG_RE = re.compile(r'^(-?)(?:abs\()?([vas])(?:(\d+)|\[(\d+):(\d+)\])\)?$')

def split_ops(s):
    out, depth, cur = [], 0, ""
    for ch in s:
        if ch in "[(": depth += 1
        if ch in "])": depth -= 1
        if ch == "," and depth == 0:
            out.append(cur.strip()); cur = ""
        else:
            cur += ch
    if cur.strip(): out.append(cur.strip())
    return out

def regs_of(tok):
    tok = tok.split()[0] if tok else tok
    if tok in ("vcc",): return {("s", 106), ("s", 107)}
    if tok == "vcc_lo": return {("s", 106)}
    if tok == "vcc_hi": return {("s", 107)}
    if tok == "exec": return {("s", 126), ("s", 127)}
    if tok == "m0": return {("s", 124)}
    m = REG_RE.match(tok)
    if not m: return set()
    k = m.group(2)
    if m.group(3) is not None: return {(k, int(m.group(3)))}
    return {(k, i) for i in range(int(m.group(4)), int(m.group(5)) + 1)}

TRANS = ("v_exp_f32", "v_log_f32", "v_rcp_f32", "v_rsq_f32", "v_sqrt_f32", "v_sin_f32", "v_cos_f32")

class Ins:
    __slots__ = ("text", "mn", "defs", "uses", "ab", "c", "kind", "passes", "states", "data")
    def __init__(self, text):
        self.text = text
        t = text.split(";")[0].strip()
        self.defs, self.uses, self.ab, self.c, self.data = set(), set(), set(), set(), set()
        self.kind = "other"; self.passes = 0; self.states = 1
        if not t or t.endswith(":") or t.startswith("."):
            self.mn = ""; self.kind = "label"; self.states = 0; return
        parts = t.split(None, 1)
        mn = self.mn = parts[0]
        ops = split_ops(parts[1]) if len(parts) > 1 else []
        R = [regs_of(o) for o in ops]
        allr = lambda rs: set().union(*rs) if rs else set()
        if mn == "s_nop":
            self.states = int(ops[0], 0) + 1; self.kind = "nop"
        elif mn.startswith("v_mfma"):
            self.kind = "mfma"; self.defs = R[0]; self.ab = R[1] | R[2]; self.c = R[3]; self.uses = self.ab | self.c
            self.passes = 8 if "32x32" in mn else 4
        elif mn.startswith("v_"):
            self.kind = "valu"
            if (mn.startswith("v_permlane") and "swap" in mn) or mn.startswith("v_swap"):
                self.defs = R[0] | R[1]; self.uses = R[0] | R[1]
            elif mn.startswith(("v_fmac", "v_dot2c", "v_pk_fmac")):
                self.defs = R[0]; self.uses = allr(R)
            elif mn.startswith(("v_add_co", "v_sub_co", "v_addc_co", "v_subb_co")):
                self.defs = R[0] | R[1]; self.uses = allr(R[2:])
            else:
                self.defs = R[0]; self.uses = allr(R[1:])
                if "_dpp" in mn or "dpp" in t or "sdwa" in mn: self.uses |= R[0]
        elif mn.startswith("ds_"):
            self.kind = "ds"
            if mn.startswith(("ds_read", "ds_bpermute", "ds_permute", "ds_swizzle")):
                self.defs = R[0]; self.uses = allr(R[1:])
            else:
                self.uses = allr(R)
        elif mn.startswith(("buffer_", "global_")):
            self.kind = "vmem"
            islds = bool(re.search(r'\blds\b', t))
            if "load" in mn and not islds:
                self.defs = R[0]; self.uses = allr(R[1:])
            else:
                self.uses = allr(R)
                if islds: self.uses |= {("s", 124)}
                if "store" in mn and ("x4" in mn or "x3" in mn):
                    self.data = R[0] if mn.startswith("buffer_") else R[1]
        elif mn.startswith("s_"):
            self.kind = "salu"
            if mn.startswith(("s_cmp", "s_cbranch", "s_branch", "s_waitcnt", "s_barrier", "s_endpgm", "s_sleep", "s_setprio", "s_bitcmp")):
                self.uses = allr(R)
            else:
                self.defs = R[0] if R else set(); self.uses = allr(R[1:])

def need(p, c):
    n = 0
    isv = lambda s: {r for r in s if r[0] in "va"}
    iss = lambda s: {r for r in s if r[0] == "s"}
    if p.kind == "valu":
        dv, dsg = isv(p.defs), iss(p.defs)
        if c.kind == "mfma" and dv & c.uses: n = max(n, 2)
        if c.kind == "valu":
            if c.mn.startswith("v_permlane") and dv & c.uses: n = max(n, 2)
            if ("dpp" in c.text) and dv & c.uses: n = max(n, 2)
            if c.mn.startswith(("v_readfirstlane", "v_readlane")) and dv & c.uses: n = max(n, 1)
            if p.mn.startswith(TRANS) and dv & c.uses: n = max(n, 1)
            if ("sdwa" in p.mn or "op_sel" in p.text) and dv & (c.uses | c.defs): n = max(n, 1)
            if dsg & c.uses: n = max(n, 4 if c.mn.startswith(("v_readlane", "v_writelane")) else 2)
            if p.mn.startswith("v_dot") and dv & (c.uses | c.defs):
                same_c = (c.mn == p.mn) and not (dv & (regs_of(split_ops(c.text.split(None,1)[1])[1]) | regs_of(split_ops(c.text.split(None,1)[1])[2])))
                if not same_c: n = max(n, 3)
        if p.mn.startswith("v_dot") and c.kind in ("mfma", "ds", "vmem") and dv & (c.uses | c.defs): n = max(n, 3)
        if c.kind == "vmem" and dsg & c.uses: n = max(n, 5)
        if c.kind == "salu" and dsg & c.uses: n = max(n, 1)
    if p.kind == "mfma":
        big = p.passes == 8
        if c.kind == "mfma":
            if p.defs & c.ab: n = max(n, 12 if big else 8)
            if p.defs & c.c and not (p.defs == c.c and p.passes == c.passes): n = max(n, 10 if big else 6)
            if p.defs & c.defs and not (p.defs & c.c): n = max(n, 12 if big else 8)
        elif c.kind in ("valu", "ds", "vmem"):
            if p.defs & (c.uses | c.defs): n = max(n, 12 if big else 8)
            if c.kind == "valu" and p.c & c.defs: n = max(n, 7 if big else 3)
    if p.kind == "vmem" and p.data and c.kind in ("valu", "mfma", "ds", "vmem") and p.data & c.defs: n = max(n, 2)
    if p.kind == "salu" and ("s", 124) in p.defs and c.kind == "vmem" and ("s", 124) in c.uses: n = max(n, 1)
    return n

def pad_hazards(lines):
    out = []
    for text in lines:
        c = Ins(text)
        if c.kind not in ("label", "nop"):
            dist, req = 0, 0
            for p in reversed(out):
                if dist >= 13: break
                if p.kind not in ("label", "nop"):
                    k = need(p, c)
                    if k - dist > req: req = k - dist
                dist += p.states
            if req > 0:
                out.append(Ins(f"s_nop {req-1}"))
        out.append(c)
    return [i.text for i in out]

class Gen:
    def __init__(self):
        self.L = []; self.nvm = 0; self.nds = 0
        self.vm_done = -1; self.ds_done = -1
        self.lab = 0
    def I(self, *ss):
        for s in ss: self.L.append(s)
    def C(self, s): self.L.append("; " + s)
    def vm(self, s):
        self.L.append(s); self.nvm += 1; return self.nvm - 1
    def ds(self, s):
        self.L.append(s); self.nds += 1; return self.nds - 1
    def wait(self, vm=None, ds=None):
        parts = []
        if vm is not None and vm > self.vm_done:
            n = min(self.nvm - 1 - vm, 63); parts.append(f"vmcnt({n})"); self.vm_done = self.nvm - 1 - n
        if ds is not None and ds > self.ds_done:
            n = min(self.nds - 1 - ds, 15); parts.append(f"lgkmcnt({n})"); self.ds_done = self.nds - 1 - n
        if parts: self.L.append("s_waitcnt " + " ".join(parts))
    def wait_all_ds(self): self.wait(ds=self.nds - 1)
    def wait_all_vm(self): self.wait(vm=self.nvm - 1)
    def label(self, p="L"):
        self.lab += 1; return f"{p}{self.lab}"

def vr(b, n=1, k="v"):
    return f"{k}{b}" if n == 1 else f"{k}[{b}:{b+n-1}]"
def ar(b, n=1): return vr(b, n, "a")
def sr(b, n=1): return vr(b, n, "s")
```

```python
import sys
from asmlib import *

NAME = "parallel_sum__ssm_conv_h3__dense_activation_silu__prompt"

H_OFF, KVT_OFF, YT_OFF = 0, 0x600000, 0x800000
FA_OFF, FB_OFF, FC_OFF, E_OFF, DBG_OFF = 0xA00000, 0xA20000, 0xA40000, 0xA60000, 0xB00000
WS_BYTES = 0x1000000
L_W1, L_Q = 0, 49152
L_SSM, CSTR = 98304, 4160
L_U, USTR = 131584, 4608
L_STAT, L_CS = 140800, 141824
L_Z = 143360
L_PART, PSTR = L_SSM, 272
LDS_BYTES = 163840
S_Q, S_K, S_V, S_W1, S_W1U, S_W2, S_SSM, S_WS, S_WSU, S_OUT = 28, 32, 36, 40, 44, 48, 52, 56, 60, 64
sX, sC, sW, sR, sJ, sE, sNON, sUS, sKAP, sOQ, sOW, sWK = 68, 69, 70, 71, 72, 73, 74, 75, 76, 77, 78, 79
sT0, sT1, sT2, sT3 = 80, 81, 82, 83
sW2O, sW2S, sW2E, sHO, sHS, sHE = 84, 85, 86, 87, 88, 89
sSPIN, sW3K, sHST, sHST2 = 90, 91, 92, 93
sPSH, sPD = 10, 14
sSTAMP = 4

def gen(stop=99, stamps=False):
    g = Gen(); I = g.I
    stamp_regs = []
    def stamp(name):
        if not stamps: return
        idx = len(stamp_regs); stamp_regs.append(name)
        I("s_memtime s[94:95]", "s_waitcnt lgkmcnt(0)", f"v_writelane_b32 v255, s94, {idx}")
        g.ds_done = g.nds - 1
    def finish():
        if stamps:
            stamp("end")
            I("s_memrealtime s[94:95]", "s_waitcnt lgkmcnt(0)", "v_writelane_b32 v255, s94, 62", f"v_writelane_b32 v255, s96, 63")
            I(f"s_lshl_b32 s{sT0}, s2, 2", f"s_add_u32 s{sT0}, s{sT0}, s{sW}", f"s_lshl_b32 s{sT0}, s{sT0}, 8", f"s_add_u32 s{sT0}, s{sT0}, {DBG_OFF}")
            I("v_lshlrev_b32 v254, 2, v1")
            g.vm(f"buffer_store_dword v255, v254, {sr(S_WS,4)}, s{sT0} offen")
        I("LEND:", "s_endpgm")

    vL = 1
    vQG = 2
    vW1G = 6
    vQR = 8
    vW1R = 12
    vW2G = 16
    vL16 = 17
    vW2R = 18
    vT = 22
    vMASK = 32
    vSUM = 36
    vCS = 40
    vSQ = 52
    vNON = 56
    vFL = 57
    vFA = 58
    vC1 = 60
    vSD = 62
    vACC = 64
    vQF = 112
    vWF = 144
    vX = 168

    I(f"s_cmp_ge_u32 s2, 256", "s_cbranch_scc1 LEND")
    if stamps: I("s_memrealtime s[96:97]")
    for srd, off in ((S_K, 8), (S_V, 16), (S_Q, 0), (S_W1, 56), (S_W1U, 56), (sPSH, 24), (S_WS, 88), (S_WSU, 88), (S_SSM, 32), (sPD, 40), (S_W2, 64), (S_OUT, 72)):
        I(f"s_load_dwordx2 {sr(srd,2)}, s[0:1], {off}")
    I("s_getpc_b64 s[4:5]", "LPC:")
    I(f"v_and_b32 v{vL}, 63, v0", f"v_lshrrev_b32 v{vT}, 6, v0")
    I(f"s_and_b32 s{sX}, s2, 7", f"s_lshr_b32 s{sC}, s2, 3")
    I(f"v_readfirstlane_b32 s{sW}, v{vT}")
    I(f"s_lshl_b32 s{sT0}, s{sC}, 2", f"s_add_u32 s{sT0}, s{sT0}, s{sW}", f"s_lshl_b32 s{sT0}, s{sT0}, 8")
    I(f"v_lshlrev_b32 v{vT}, 7, v{vL}", f"v_add_u32 v{vT}, s{sT0}, v{vT}", f"v_min_u32 v{vT}, LEND-LPC, v{vT}")
    I("s_mov_b64 exec, 3")
    g.vm(f"global_load_dword v{vT+1}, v{vT}, s[4:5]")
    I("s_mov_b64 exec, -1")
    I(f"s_mov_b32 s{S_K+3}, 0x20000", f"s_mov_b32 s{S_K+2}, 0x200000")
    for srd in (S_V, S_Q): I(f"s_mov_b32 s{srd+3}, s{S_K+3}", f"s_mov_b32 s{srd+2}, s{S_K+2}")
    I(f"s_mov_b32 s{S_W1+3}, s{S_K+3}", f"s_mov_b32 s{S_W1+2}, {512*1376*2}", f"s_mov_b32 s{S_W1U+3}, s{S_K+3}")
    I(f"s_and_b32 s{sE}, s{sX}, 1", f"s_and_b32 s{sJ}, s{sC}, 7", f"s_lshr_b32 s{sT0}, s{sC}, 3",
      f"s_lshr_b32 s{sR}, s{sX}, 1", f"s_lshl_b32 s{sR}, s{sR}, 2", f"s_add_u32 s{sR}, s{sR}, s{sT0}")
    I(f"s_lshl_b32 s{sKAP}, s{sT0}, 1", f"s_add_u32 s{sKAP}, s{sKAP}, s{sJ}", f"s_and_b32 s{sKAP}, s{sKAP}, 7")
    I(f"s_mul_i32 s{sUS}, s{sE}, 22", f"s_mul_i32 s{sT1}, s{sJ}, 3", f"s_add_u32 s{sUS}, s{sUS}, s{sT1}",
      f"s_add_u32 s{sT1}, s{sJ}, s{sE}", f"s_max_u32 s{sT2}, s{sT1}, 6", f"s_sub_u32 s{sT2}, s{sT2}, 6", f"s_sub_u32 s{sUS}, s{sUS}, s{sT2}",
      f"s_cmp_lt_u32 s{sT1}, 6", f"s_cselect_b32 s{S_W1U+2}, s{S_W1+2}, 0", f"s_cselect_b32 s{S_WSU+2}, {WS_BYTES}, 0")
    I(f"s_lshl_b32 s{sWK}, s{sW}, 10", f"s_mul_i32 s{sW3K}, s{sW}, 3072")
    I(f"s_lshl_b32 s{sT0}, s{sC}, 16", f"s_lshl_b32 s{sT1}, s{sW}, 14", f"s_add_u32 s{sT0}, s{sT0}, s{sT1}",
      f"s_lshl_b32 s{sT1}, s{sX}, 7", f"s_add_u32 s{sT0}, s{sT0}, s{sT1}")
    I(f"v_lshrrev_b32 v{vT}, 3, v{vL}", f"v_and_b32 v{vT+3}, 7, v{vL}",
      f"v_lshlrev_b32 v{vT+4}, 10, v{vT}",
      f"v_lshl_add_u32 v{vT+2}, v{vT+3}, 4, v{vT+4}",
      f"v_add_u32 v{vX+1}, s{sT0}, v{vT+2}", f"v_add_u32 v{vX}, 0xffffe000, v{vX+1}", f"v_add_u32 v{vX+2}, 0x2000, v{vX+1}")
    I(f"s_lshl_b32 s{sT1}, s{sX}, 9", f"v_lshl_add_u32 v{vX+3}, v{vL}, 3, s{sT1}")
    I(f"s_lshl_b32 s{sT0}, s{sR}, 17", f"s_lshl_b32 s{sT1}, s{sW}, 15", f"s_add_u32 s{sT0}, s{sT0}, s{sT1}")
    I(f"v_lshrrev_b32 v{vT+5}, 4, v{vL}", f"v_xor_b32 v{vT+6}, v{vT+3}, v{vT+5}",
      f"v_lshl_add_u32 v{vT+6}, v{vT+6}, 4, v{vT+4}", f"v_add_u32 v{vQG}, s{sT0}, v{vT+6}",
      f"v_xor_b32 v{vQG+1}, 64, v{vQG}", f"v_add_u32 v{vQG+1}, 0x2000, v{vQG+1}",
      f"v_add_u32 v{vQG+2}, 0x4000, v{vQG}", f"v_add_u32 v{vQG+3}, 0x4000, v{vQG+1}")
    I(f"s_lshl_b32 s{sT0}, s{sW}, 4", f"v_lshrrev_b32 v{vT+6}, 2, v{vL}", f"v_add_u32 v{vT+7}, s{sT0}, v{vT+6}",
      f"v_mul_u32_u24 v{vT+7}, 2752, v{vT+7}", f"v_and_b32 v{vT+8}, 3, v{vL}", f"v_lshl_add_u32 v{vT+7}, v{vT+8}, 4, v{vT+7}",
      f"s_lshl_b32 s{sT0}, s{sUS}, 6", f"v_add_u32 v{vW1G}, s{sT0}, v{vT+7}")
    I(f"s_mul_i32 s{sT2}, s{sW}, 5120", f"s_add_u32 s{sT2}, s{sT2}, {L_Z}")
    I("s_waitcnt lgkmcnt(0)")
    I(f"s_load_dword s{sNON}, {sr(S_WS,2)}, {E_OFF & 0xfffff}" if False else f"s_add_u32 s6, s{S_WS}, {E_OFF}", f"s_addc_u32 s7, s{S_WS+1}, 0", f"s_load_dword s{sNON}, s[6:7], 0")
    for i in range(3):
        I(f"s_add_u32 m0, s{sT2}, {i*1024}"); g.vm(f"buffer_load_dwordx4 v{vX+i}, {sr(S_K,4)}, 0 offen lds")
    for i in range(2):
        I(f"s_add_u32 m0, s{sT2}, {(3+i)*1024}"); g.vm(f"buffer_load_dwordx4 v{vX+1+i}, {sr(S_V,4)}, 0 offen lds")
    tok_kv = g.vm(f"global_load_dwordx2 {vr(vX+4,2)}, v{vX+3}, {sr(sPSH,2)}")

    tok_chunk = {}
    def chunk_items(i):
        items = []
        def head():
            I(f"s_lshl_b32 s{sOQ}, s{sKAP}, 7", f"s_mul_i32 s{sOW}, s{sKAP}, {64*2752}",
              f"s_add_u32 s{sKAP}, s{sKAP}, 1", f"s_and_b32 s{sKAP}, s{sKAP}, 7")
        def w1(u):
            def f():
                if u == 0: head()
                I(f"s_add_u32 m0, s{sW3K}, {L_W1 + (i%4)*12288 + u*1024 - u*64}")
                g.vm(f"buffer_load_dwordx4 v{vW1G}, {sr(S_W1U if u==2 else S_W1,4)}, s{sOW} offen offset:{u*64} lds")
            return f
        def q(k):
            def f():
                I(f"s_add_u32 m0, s{sWK}, {L_Q + (i%3)*16384 + k*4096}")
                t = g.vm(f"buffer_load_dwordx4 v{vQG+k}, {sr(S_Q,4)}, s{sOQ} offen lds")
                if k == 3: tok_chunk[i] = t
            return f
        return [w1(0), w1(1), w1(2)], [q(0), q(1), q(2), q(3)]
    for i in range(3):
        a, b = chunk_items(i)
        for f in a + b: f()
    stamp("issued")

    I(f"s_mov_b32 s{S_WS+3}, s{S_K+3}", f"s_mov_b32 s{S_WS+2}, {WS_BYTES}", f"s_mov_b32 s{S_WSU+3}, s{S_K+3}",
      f"s_mov_b32 s{S_W2+3}, s{S_K+3}", f"s_mov_b32 s{S_W2+2}, s{S_W1+2}",
      f"s_mov_b32 s{S_OUT+3}, s{S_K+3}", f"s_mov_b32 s{S_OUT+2}, s{S_K+2}",
      f"s_mov_b32 s{S_SSM+3}, s{S_K+3}", f"s_mov_b32 s{S_SSM+2}, 4096")
    I(f"s_lshl_b32 s{sT0}, s{sX}, 6", f"s_lshl_b32 s{sT1}, s{sC}, 1", f"s_add_u32 s{sT0}, s{sT0}, s{sT1}",
      f"s_lshr_b32 s{sT1}, s{sW}, 1", f"s_add_u32 s8, s{sT0}, s{sT1}",
      f"s_lshl_b32 s{sT0}, s8, 12", f"s_add_u32 s{S_SSM}, s{S_SSM}, s{sT0}", f"s_addc_u32 s{S_SSM+1}, s{S_SSM+1}, 0")
    I(f"v_lshlrev_b32 v{vL16}, 4, v{vL}")
    t0, t1, t2, t3, t4 = vT, vT+1, vT+2, vT+3, vT+4
    I(f"v_and_b32 v{t0}, 16, v{vL}", f"v_lshlrev_b32 v{t0}, 1, v{t0}", f"v_and_b32 v{t1}, 3, v{vL}", f"v_lshl_add_u32 v{vT+9}, v{t1}, 3, v{t0}")
    I(f"v_lshrrev_b32 v{t0}, 5, v{vL}", f"v_bfe_u32 v{t1}, v{vL}, 2, 2")
    I(f"v_lshl_add_u32 v{t2}, v{t0}, 3, v{t1}", f"v_lshl_add_u32 v{t2}, v{t2}, 6, v{vT+9}")
    I(f"v_bfe_u32 v{t3}, v{vL}, 3, 2", f"v_lshlrev_b32 v{t3}, 12, v{t3}", f"v_and_b32 v{t4}, 7, v{vL}", f"v_lshl_add_u32 v{t3}, v{t4}, 7, v{t3}",
      f"s_add_u32 s{sT0}, s{sWK}, {L_Q}", f"v_add_u32 v{t3}, s{sT0}, v{t3}",
      f"v_bfe_u32 v{t4}, v{vL}, 1, 3", f"v_xor_b32 v{t4}, v{t4}, v{t0}", f"v_lshl_add_u32 v{t3}, v{t4}, 4, v{t3}")
    for i in range(4):
        I(f"s_add_u32 s{sT0}, s{sW}, {i}", f"s_and_b32 s{sT0}, s{sT0}, 3", f"s_mul_i32 s{sT1}, s{sT0}, 3072", f"s_lshl_b32 s{sT0}, s{sT0}, 5",
          f"v_add_u32 v{vW1R+i}, s{sT1}, v{t2}", f"v_xor_b32 v{vQR+i}, s{sT0}, v{t3}")
    I(f"v_lshl_add_u32 v{t2}, v{t0}, 2, v{t1}", f"v_lshl_add_u32 v{t2}, v{t2}, 7, v{vT+9}",
      f"v_and_b32 v{t3}, 8, v{vL}", f"v_lshl_add_u32 v{t2}, v{t3}, 3, v{t2}",
      f"s_lshr_b32 s{sT0}, s{sW}, 1", f"s_lshl_b32 s{sT0}, s{sT0}, 11",
      f"v_add_u32 v{vW2R}, s{sT0}, v{t2}", f"v_xor_b32 v{vW2R+1}, 64, v{vW2R}",
      f"v_add_u32 v{vW2R+2}, 49152, v{vW2R}", f"v_add_u32 v{vW2R+3}, 49152, v{vW2R+1}")
    I(f"s_and_b32 s{sT0}, s{sW}, 1", f"s_lshl_b32 s{sT0}, s{sT0}, 13", f"s_lshl_b32 s{sT1}, s{sJ}, 7", f"s_add_u32 s{sT0}, s{sT0}, s{sT1}",
      f"v_lshrrev_b32 v{t2}, 3, v{vL}", f"v_lshlrev_b32 v{t2}, 10, v{t2}", f"v_and_b32 v{t3}, 7, v{vL}", f"v_lshl_add_u32 v{t2}, v{t3}, 4, v{t2}",
      f"v_and_b32 v{t3}, 16, v{vL}", f"v_lshlrev_b32 v{t3}, 2, v{t3}", f"v_xor_b32 v{t2}, v{t2}, v{t3}", f"v_add_u32 v{vW2G}, s{sT0}, v{t2}")
    I(f"s_mul_i32 s{sT0}, s{sJ}, 5", f"s_and_b32 s{sT1}, s{sR}, 3", f"s_mul_i32 s{sT1}, s{sT1}, 11", f"s_add_u32 s{sT0}, s{sT0}, s{sT1}",
      f"s_sub_u32 s{sT1}, s{sT0}, 43", f"s_min_u32 s{sT0}, s{sT0}, s{sT1}",
      f"s_lshr_b32 s{sT1}, s{sW}, 1", f"s_mul_i32 s{sT1}, s{sT1}, 43",
      f"s_lshl_b32 s{sW2S}, s{sT1}, 14", f"s_add_u32 s{sW2E}, s{sW2S}, {43*16384}",
      f"s_lshl_b32 s{sT2}, s{sT0}, 14", f"s_add_u32 s{sW2O}, s{sW2S}, s{sT2}",
      f"s_lshl_b32 s{sT2}, s{sR}, 2", f"s_lshl_b32 s{sT3}, s{sE}, 1", f"s_add_u32 s{sT2}, s{sT2}, s{sT3}", f"s_and_b32 s{sT3}, s{sW}, 1",
      f"s_add_u32 s9, s{sT2}, s{sT3}",
      f"s_mul_i32 s{sT2}, s9, 86", f"s_add_u32 s{sT2}, s{sT2}, s{sT1}", f"s_lshl_b32 s{sHS}, s{sT2}, 10",
      f"s_add_u32 s{sHE}, s{sHS}, {43*1024}", f"s_lshl_b32 s{sT2}, s{sT0}, 10", f"s_add_u32 s{sHO}, s{sHS}, s{sT2}",
      f"s_lshl_b32 s{sT2}, s{sR}, 2", f"s_add_u32 s{sT2}, s{sT2}, s{sW}", f"s_mul_i32 s{sT2}, s{sT2}, 86", f"s_lshl_b32 s{sT3}, s{sUS}, 1",
      f"s_add_u32 s{sT2}, s{sT2}, s{sT3}", f"s_lshl_b32 s{sHST}, s{sT2}, 10", f"s_add_u32 s{sHST2}, s{sHST}, 4096")
    I(f"v_lshrrev_b32 v{t2}, 4, v{vL}", f"v_xor_b32 v{t2}, v{t2}, v{vL}", f"v_and_b32 v{t2}, 1, v{t2}", f"v_cmp_eq_u32 vcc, 0, v{t2}",
      f"v_mov_b32 v{t3}, 0x3f803f80", f"v_cndmask_b32 v{vMASK}, 0, v{t3}, vcc")
    for i in range(1, 4): I(f"v_mov_b32 v{vMASK+i}, v{vMASK}")
    for i in range(4): I(f"v_mov_b32 v{vSQ+i}, 0")
    I("s_waitcnt lgkmcnt(0)")
    I(f"s_mul_i32 s{sNON}, s{sNON}, 1664525", f"s_add_u32 s{sNON}, s{sNON}, 1013904223", f"v_mov_b32 v{vNON}, s{sNON}")

    vK, vV, vO, vKS = vX+8, vX+18, vX+26, vX+36
    vWA, vWB = vX+6, vX+7
    I(f"v_lshrrev_b32 v{t2}, 4, v{vL}", f"v_lshlrev_b32 v{t2}, 5, v{t2}", f"v_lshl_add_u32 v{t2}, v{t1}, 7, v{t2}",
      f"v_and_b32 v{t3}, 3, v{vL}", f"v_lshl_add_u32 v{t2}, v{t3}, 3, v{t2}",
      f"s_mul_i32 s{sT2}, s{sW}, 5120", f"s_add_u32 s{sT2}, s{sT2}, {L_Z}", f"v_add_u32 v{t2}, s{sT2}, v{t2}")
    g.wait(vm=tok_kv)
    stamp("kv_landed")
    tk = [g.ds(f"ds_read_b64_tr_b16 {vr(vK+2*j,2)}, v{t2} offset:{512+512*j}") for j in range(5)]
    tv = [g.ds(f"ds_read_b64_tr_b16 {vr(vV+2*j,2)}, v{t2} offset:{3072+512*j}") for j in range(4)]
    I(f"v_alignbit_b32 v{vWA}, v{vX+4}, v{vX+4}, 16", f"v_alignbit_b32 v{vWB}, v{vX+5}, v{vX+5}, 16")
    I(f"s_lshl_b32 s{sT0}, s{sW}, 5", f"s_sub_u32 s{sT0}, {L_U+96}, s{sT0}", f"v_mov_b32 v{t3}, s{sT0}", f"v_mad_u32_u24 v{t3}, v{vL}, v{vL}, v{t3}" if False else f"v_mul_u32_u24 v{t4}, 144, v{vL}", f"v_add_u32 v{t3}, v{t3}, v{t4}")
    g.wait(ds=tk[4])
    for j in range(9): I(f"v_alignbit_b32 v{vO+j}, v{vK+j+1}, v{vK+j}, 16")
    for a in range(8):
        I(f"v_dot2_f32_bf16 v{vKS+2*a}, v{vO+a}, v{vWB}, 0", f"v_dot2_f32_bf16 v{vKS+2*a+1}, v{vK+a+1}, v{vWB}, 0")
    for a in range(8):
        I(f"v_dot2_f32_bf16 v{vKS+2*a}, v{vO+a+1}, v{vWA}, v{vKS+2*a}", f"v_dot2_f32_bf16 v{vKS+2*a+1}, v{vK+a+2}, v{vWA}, v{vKS+2*a+1}")
    g.wait(ds=tv[3])
    vVF = vX+52
    for a in range(8):
        I(f"v_lshlrev_b32 v{vVF+2*a}, 16, v{vV+a}", f"v_and_b32 v{vVF+2*a+1}, 0xffff0000, v{vV+a}")
    for a in range(8):
        I(f"v_pk_mul_f32 {vr(vKS+2*a,2)}, {vr(vKS+2*a,2)}, {vr(vVF+2*a,2)}")
    vP = vX+68
    for j in range(8):
        I(f"v_cvt_pk_bf16_f32 v{vP+j}, v{vKS+15-2*j}, v{vKS+14-2*j}")
    g.ds(f"ds_write_b128 v{t3}, {vr(vP,4)}"); g.ds(f"ds_write_b128 v{t3}, {vr(vP+4,4)} offset:16")
    I(f"s_lshl_b32 s{sT0}, s{sW}, 4", f"v_lshrrev_b32 v{t2}, 3, v{vL}", f"v_add_u32 v{t2}, s{sT0}, v{t2}", f"v_and_b32 v{t4}, 7, v{vL}", f"v_lshlrev_b32 v{t4}, 4, v{t4}",
      f"v_mul_u32_u24 v{vX}, 144, v{t2}", f"v_add3_u32 v{vX}, v{vX}, v{t4}, 0", f"v_add_u32 v{vX}, {L_U}, v{vX}",
      f"v_lshl_add_u32 v{vX+1}, v{t2}, 12, v{t4}", f"v_add_u32 v{vX+2}, 0x8000, v{vX+1}",
      f"s_lshl_b32 s{sT0}, s{sX}, 18", f"s_lshl_b32 s{sT1}, s{sC}, 7", f"s_sub_u32 s{sT0}, s{sT0}, s{sT1}", f"s_add_u32 s12, s{sT0}, {KVT_OFF+3968}")
    I(f"s_lshl_b32 s{sT0}, s{sX}, 2", f"s_add_u32 s{sT0}, s{sT0}, s{sW}", f"s_lshl_b32 s{sT0}, s{sT0}, 5", f"s_add_u32 s{sT0}, s{sT0}, s{sC}",
      f"s_lshl_b32 s{sT0}, s{sT0}, 7", f"s_add_u32 s13, s{sT0}, {FA_OFF}")
    stamp("kv_done")

    def flag_store(sreg):
        I("s_mov_b64 exec, 1")
        t = g.vm(f"buffer_store_dword v{vNON}, off, {sr(S_WS,4)}, s{sreg} sc1")
        I("s_mov_b64 exec, -1")
        return t
    def poll_issue(sreg):
        return g.vm(f"buffer_load_dword v{vFL}, v{vFA}, {sr(S_WS,4)}, s{sreg} offen sc1")
    def poll_check(tok, sreg):
        ok, lp = g.label("LOK"), g.label("LPOLL")
        g.wait(vm=tok)
        I(f"v_cmp_ne_u32 vcc, s{sNON}, v{vFL}", "s_nop 1", f"s_cbranch_vccz {ok}", f"s_mov_b32 s{sSPIN}, 400000",
          f"{lp}:", f"buffer_load_dword v{vFL}, v{vFA}, {sr(S_WS,4)}, s{sreg} offen sc1", f"s_sub_u32 s{sSPIN}, s{sSPIN}, 1", "s_waitcnt vmcnt(0)",
          f"s_cbranch_scc1 {ok}", f"v_cmp_ne_u32 vcc, s{sNON}, v{vFL}", "s_nop 1", f"s_cbranch_vccnz {lp}", f"{ok}:")

    G1 = [0, 1, 2, 20, 21, 22, 23]; G2 = [3, 4, 5, 12, 13, 14, 15]; G3 = [6, 7, 8, 16, 17, 18, 19]; G4 = [9, 10, 11]
    slot_unit = G1 + G2 + G3 + G4 + G1 + G2 + G3[:5]
    NHELD = 19
    aW2 = 0
    aH = 152
    NHR = 16
    w2_next = [0]; tok_w2 = {}
    def w2_issue():
        n = w2_next[0]; w2_next[0] += 1
        I(f"s_add_u32 m0, s{sWK}, {slot_unit[n]*4096}")
        tok_w2[n] = g.vm(f"buffer_load_dwordx4 v{vW2G}, {sr(S_W2,4)}, s{sW2O} offen lds")
        I(f"s_add_u32 s{sW2O}, s{sW2O}, 16384", f"s_cmp_ge_u32 s{sW2O}, s{sW2E}", f"s_cselect_b32 s{sW2O}, s{sW2S}, s{sW2O}")
    def w2_read(n, dst, kind):
        u = slot_unit[n]; hi = 2 if u >= 12 else 0; base = (u - 12 if u >= 12 else u) * 4096
        t = None
        for tl in range(2):
            for hh in range(2):
                t = g.ds(f"ds_read_b64_tr_b16 {vr(dst+4*tl+2*hh,2,kind)}, v{vW2R+hi+tl} offset:{base+hh*1024}")
        return t

    def w1_reads(n):
        i, j = divmod(n, 4); b = vWF + 12 * (n % 2); t = None
        for u in range(3):
            for hh in range(2):
                t = g.ds(f"ds_read_b64_tr_b16 {vr(b+4*u+2*hh,2)}, v{vW1R+j} offset:{(i%4)*12288+u*1024+hh*256}")
        return t
    def main_mfma(n, side):
        i, j = divmod(n, 4); b = vWF + 12 * (n % 2); q = vQF + 16 * (i % 2) + 4 * j
        for u in range(3):
            c = "0" if n == 0 else vr(vACC+16*u, 16)
            I(f"v_mfma_f32_32x32x16_bf16 {vr(vACC+16*u,16)}, {vr(b+4*u,4)}, {vr(q,4)}, {c}")
            side()
        if j == 0:
            for u in range(3):
                c = "0" if n == 0 else vr(vCS+4*u, 4)
                I(f"v_mfma_f32_16x16x32_bf16 {vr(vCS+4*u,4)}, {vr(vMASK,4)}, {vr(b+4*u,4)}, {c}")
    def stat_ops(i, j):
        q = vQF + 16 * (i % 2) + 4 * j
        c = "0" if (i == 0 and j == 0) else vr(vSUM, 4)
        r = [f"v_mfma_f32_16x16x32_bf16 {vr(vSUM,4)}, {vr(vMASK,4)}, {vr(q,4)}, {c}"]
        r += [f"v_dot2_f32_bf16 v{vSQ+k}, v{q+k}, v{q+k}, v{vSQ+k}" for k in range(4)]
        return r
    tok = {}
    vS1, vS2 = vX+76, vX+80
    vSS = vX+72
    for i in range(8):
        g.wait(vm=tok_chunk[i], ds=g.nds-1)
        I("s_barrier")
        stamp(f"it{i}")
        pre, post = [], []
        if i + 3 <= 7:
            pre, post = chunk_items(i + 3)
        else:
            pre = [w2_issue] * 3; post = [w2_issue] * 4
        if i == 0:
            def kvrd():
                tok["kvr"] = [g.ds(f"ds_read_b128 {vr(vP,4)}, v{vX}"), g.ds(f"ds_read_b128 {vr(vP+4,4)}, v{vX} offset:{8*144}")]
            def kvst():
                g.vm(f"buffer_store_dwordx4 {vr(vP,4)}, v{vX+1}, {sr(S_WS,4)}, s12 offen sc1")
                tok["kvst"] = g.vm(f"buffer_store_dwordx4 {vr(vP+4,4)}, v{vX+2}, {sr(S_WS,4)}, s12 offen sc1")
            kvrd(); post = [kvst] + post
        if i == 3:
            assert g.vm_done >= tok["kvst"]
            pre = [lambda: flag_store(13)] + pre
        if i == 5:
            def ssm_ld():
                I(f"s_and_b32 s{sT0}, s{sW}, 1", f"s_lshl_b32 s{sT0}, s{sT0}, 11", f"v_add_u32 v{t0}, s{sT0}, v{vL16}", f"v_add_u32 v{t1}, -8, v{t0}", f"v_add_u32 v{t2}, 1016, v{t0}")
                g.vm(f"buffer_load_dwordx2 {vr(vSS,2)}, v{t1}, {sr(S_SSM,4)}, 0 offen")
                g.vm(f"buffer_load_dwordx4 {vr(vSS+2,4)}, v{t0}, {sr(S_SSM,4)}, 0 offen")
                g.vm(f"buffer_load_dwordx2 {vr(vSS+6,2)}, v{t2}, {sr(S_SSM,4)}, 0 offen")
                tok["ssm"] = g.vm(f"buffer_load_dwordx4 {vr(vSS+8,4)}, v{t0}, {sr(S_SSM,4)}, 0 offen offset:1024")
            pre = [ssm_ld] + pre
        if i == 7:
            def pollA():
                I(f"s_lshl_b32 s{sT0}, s{sX}, 2", f"s_lshr_b32 s{sT1}, s{sC}, 3", f"s_add_u32 s{sT0}, s{sT0}, s{sT1}", f"s_lshl_b32 s{sT0}, s{sT0}, 12", f"s_add_u32 s13, s{sT0}, {FA_OFF}",
                  f"v_lshrrev_b32 v{vFA}, 1, v{vL}", f"v_lshlrev_b32 v{vFA}, 7, v{vFA}")
                tok["pollA"] = poll_issue(13)
            pre = [pollA] + pre
        for k in range(4):
            tq = g.ds(f"ds_read_b128 {vr(vQF+16*(i%2)+4*k,4)}, v{vQR+k} offset:{(i%3)*16384}")
        tw = w1_reads(4 * i)
        queue = list(pre); extra = []
        def side():
            if queue: queue.pop(0)()
            for _ in range(2):
                if extra: I(extra.pop(0))
        if i > 0:
            if i < 8: extra += stat_ops(i - 1, 3) if i - 1 < 7 else []
            main_mfma(4 * i - 1, side)
            while extra: I(extra.pop(0))
        for j in range(3):
            tw_next = w1_reads(4 * i + j + 1)
            g.wait(ds=tw)
            if j == 0: queue += post
            if i < 7: extra += stat_ops(i, j)
            elif j == 0: extra += stat_ops(i, 0) + stat_ops(i, 1) + stat_ops(i, 2) + stat_ops(i, 3)
            main_mfma(4 * i + j, side)
            while extra: I(extra.pop(0))
            if i == 7 and j == 1:
                I(f"v_and_b32 v{t0}, 16, v{vL}", f"v_cmp_ne_u32 vcc, 0, v{t0}",
                  f"v_and_b32 v{t1}, 31, v{vL}", f"v_lshlrev_b32 v{t1}, 4, v{t1}", f"s_lshl_b32 s{sT0}, s{sW}, 2", f"s_add_u32 s{sT0}, s{sT0}, {L_CS}", f"v_add_u32 v{t2}, s{sT0}, v{t1}")
                for u in range(3):
                    I(f"v_cndmask_b32 v{t3}, v{vCS+4*u}, v{vCS+4*u+1}, vcc", f"v_cvt_pk_bf16_f32 v{t4}, v{t3}, v{t3}", f"v_lshlrev_b32 v{t4}, 16, v{t4}",
                      f"v_sub_f32 v{t3}, v{t3}, v{t4}", f"v_cvt_pk_bf16_f32 v{vT+5+u}, v{t4}, v{t3}")
                    g.ds(f"ds_write_b32 v{t2}, v{vT+5+u} offset:{u*512}")
                I(f"v_add_u32 v{vT+8}, {L_CS}, v{t1}")
                I(f"v_cndmask_b32 v{t0}, v{vSUM}, v{vSUM+1}, vcc",
                  f"v_add_f32 v{vSQ}, v{vSQ}, v{vSQ+1}", f"v_add_f32 v{vSQ+2}, v{vSQ+2}, v{vSQ+3}", f"v_add_f32 v{vSQ}, v{vSQ}, v{vSQ+2}", f"v_mov_b32 v{vSQ+1}, v{vSQ}",
                  f"v_mul_f32 v{t0}, {1.0/512:.10e}, v{t0}".replace(f"{1.0/512:.10e}", "0x3b000000"),
                  f"v_permlane32_swap_b32 v{vSQ}, v{vSQ+1}", f"v_add_f32 v{vSQ}, v{vSQ}, v{vSQ+1}", f"v_mul_f32 v{vSQ}, 0x3b000000, v{vSQ}",
                  f"v_fma_f32 v{vSQ}, -v{t0}, v{t0}, v{vSQ}", f"v_max_f32 v{vSQ}, 0, v{vSQ}",
                  f"v_cvt_pk_bf16_f32 v{t3}, v{t0}, v{vSQ}",
                  f"v_lshlrev_b32 v{t0}, 16, v{t3}", f"v_and_b32 v{t4}, 0xffff0000, v{t3}",
                  f"v_add_f32 v{t4}, 0x3727c5ac, v{t4}", f"v_cvt_pk_bf16_f32 v{t4}, v{t4}, v{t4}", f"v_lshlrev_b32 v{t4}, 16, v{t4}",
                  f"v_sqrt_f32 v{t4}, v{t4}", f"v_cvt_pk_bf16_f32 v{t4}, v{t4}, v{t4}", f"v_lshlrev_b32 v{vSD}, 16, v{t4}", f"v_mov_b32 v{vSD+1}, v{vSD}",
                  f"v_rcp_f32 v{t1}, v{vSD}", f"v_mul_f32 v{vC1}, 0xbfb8aa3b, v{t1}", f"v_mov_b32 v{vC1+1}, v{vC1}",
                  f"v_cvt_pk_bf16_f32 v{t3}, -v{t0}, -v{t0}", f"v_cmp_gt_u32 vcc, 32, v{vL}", f"v_cndmask_b32 v{vSUM}, 0, v{t3}, vcc",
                  f"v_mov_b32 v{vSUM+1}, v{vSUM}", f"v_mov_b32 v{vSUM+2}, v{vSUM}", f"v_mov_b32 v{vSUM+3}, v{vSUM}",
                  f"v_and_b32 v{t3}, 31, v{vL}", f"s_lshl_b32 s{sT0}, s{sW}, 8", f"s_add_u32 s{sT0}, s{sT0}, {L_STAT}", f"v_lshl_add_u32 v{t3}, v{t3}, 3, s{sT0}")
                g.ds(f"ds_write_b64 v{t3}, {vr(t0,2)}")
            tw = tw_next
        while queue: queue.pop(0)()
    g.wait(vm=tok_w2[6], ds=g.nds-1)
    I("s_barrier")
    stamp("Ba")
    tcs = [g.ds(f"ds_read_b128 {vr(vCS+4*u,4)}, v{vT+8} offset:{u*512}") for u in range(3)]
    queue = [w2_issue] * 3; extra = []
    main_mfma(31, side)
    g.wait(ds=tcs[2])
    for u in range(3):
        I(f"v_mfma_f32_32x32x16_bf16 {vr(vACC+16*u,16)}, {vr(vCS+4*u,4)}, {vr(vSUM,4)}, {vr(vACC+16*u,16)}")
    poll_check(tok["pollA"], 13)
    vKT = vQF
    I(f"s_lshl_b32 s{sT0}, s8, 12", f"s_and_b32 s{sT1}, s{sW}, 1", f"s_lshl_b32 s{sT1}, s{sT1}, 11", f"s_add_u32 s{sT0}, s{sT0}, s{sT1}", f"s_add_u32 s{sT0}, s{sT0}, {KVT_OFF}")
    g.vm(f"buffer_load_dwordx4 {vr(vKT,4)}, v{vL16}, {sr(S_WS,4)}, s{sT0} offen sc1")
    tok["kvt"] = g.vm(f"buffer_load_dwordx4 {vr(vKT+4,4)}, v{vL16}, {sr(S_WS,4)}, s{sT0} offen offset:1024 sc1")
    I(f"s_lshr_b32 s{sT0}, s8, 1", f"s_lshl_b32 s{sT0}, s{sT0}, 2", f"v_mov_b32 v{t0}, s{sT0}")
    tok["D"] = g.vm(f"global_load_dword v{vT+9}, v{t0}, {sr(sPD,2)}")
    stamp("pollA")

    vE = vX
    vHP = vX+16
    def silu(u, sidef):
        a = vACC + 16 * u; p = vHP + 8 * u
        for k in range(8): I(f"v_pk_mul_f32 {vr(vE+2*k,2)}, {vr(a+2*k,2)}, {vr(vC1,2)}")
        for k in range(16):
            I(f"v_exp_f32 v{vE+k}, v{vE+k}")
            if k % 4 == 3: sidef()
        for k in range(8): I(f"v_pk_fma_f32 {vr(vE+2*k,2)}, {vr(vE+2*k,2)}, {vr(vSD,2)}, {vr(vSD,2)}")
        for k in range(16):
            I(f"v_rcp_f32 v{vE+k}, v{vE+k}")
            if k % 4 == 3: sidef()
        for k in range(8): I(f"v_pk_mul_f32 {vr(vE+2*k,2)}, {vr(vE+2*k,2)}, {vr(a+2*k,2)}")
        for k in range(8): I(f"v_cvt_pk_bf16_f32 v{p+k}, v{vE+2*k}, v{vE+2*k+1}")
        for kk in range(2):
            if u < 2: t = g.vm(f"buffer_store_dwordx4 {vr(p+4*kk,4)}, v{vL16}, {sr(S_WS,4)}, s{sHST} offen offset:{(2*u+kk)*1024} sc1")
            else: t = g.vm(f"buffer_store_dwordx4 {vr(p+4*kk,4)}, v{vL16}, {sr(S_WSU,4)}, s{sHST2} offen offset:{kk*1024} sc1")
        return t
    def held(n): return lambda: w2_read(n, aW2 + 8 * n, "a")
    queue = [held(n) for n in range(7)]
    def sidef():
        if queue: queue.pop(0)()
    silu(0, sidef)
    while queue: queue.pop(0)()
    g.wait(vm=tok_w2[13], ds=g.nds-1); I("s_barrier")
    stamp("Ba2")
    queue = []
    for n in range(7): queue += [lambda n=n: (w2_issue(), held(7+n)())]
    silu(1, sidef)
    while queue: queue.pop(0)()
    tok["hst"] = silu(2, sidef)
    stamp("silu")
    if stop <= 2:
        g.wait(vm=g.nvm-1); finish(); return g, stamp_regs

    g.wait(vm=max(tok["ssm"], tok["kvt"], tok["D"]))
    vCP = vX
    I(f"s_lshr_b32 s{sT0}, s{sW}, 1", f"s_mul_i32 s{sT1}, s{sT0}, {4*CSTR}", f"s_mul_i32 s{sT3}, s{sT0}, {USTR}", f"s_and_b32 s{sT2}, s{sW}, 1", f"s_lshl_b32 s{sT2}, s{sT2}, 11",
      f"s_add_u32 s16, s{sT1}, {L_SSM}", f"s_add_u32 s17, s{sT3}, {L_U}",
      f"s_add_u32 s{sT1}, s16, s{sT2}", f"v_add_u32 v{t0}, s{sT1}, v{vL16}",
      f"s_add_u32 s{sT1}, s17, s{sT2}", f"v_add_u32 v{t1}, s{sT1}, v{vL16}")
    g.ds(f"ds_write_b128 v{t1}, {vr(vKT,4)}"); g.ds(f"ds_write_b128 v{t1}, {vr(vKT+4,4)} offset:1024")
    for k in range(2):
        d = vSS + 6 * k; c = vCP + 12 * k
        g.ds(f"ds_write_b128 v{t0}, {vr(d+2,4)} offset:{32+1024*k}")
        for j in range(4): I(f"v_alignbit_b32 v{c+j}, v{d+2+j}, v{d+1+j}, 16")
        for j in range(4): I(f"v_mov_b32 v{c+4+j}, v{d+1+j}")
        for j in range(4): I(f"v_alignbit_b32 v{c+8+j}, v{d+1+j}, v{d+j}, 16")
        for cc in range(3): g.ds(f"ds_write_b128 v{t0}, {vr(c+4*cc,4)} offset:{(cc+1)*CSTR+32+1024*k}")
    I(f"v_lshrrev_b32 v{t2}, 1, v{vL}", f"v_mul_u32_u24 v{t2}, {CSTR}, v{t2}", f"v_and_b32 v{t3}, 1, v{vL}", f"v_lshl_add_u32 v{t2}, v{t3}, 4, v{t2}", f"v_add_u32 v{t2}, s16, v{t2}",
      f"s_add_u32 s{sT1}, s17, {4096-128}", f"v_add_u32 v{t3}, s{sT1}, v{vL16}", f"v_cmp_gt_u32 vcc, 8, v{vL}", f"v_cndmask_b32 v{t2}, v{t3}, v{t2}, vcc")
    for j in range(4): I(f"v_mov_b32 v{vCP+24+j}, 0")
    I(f"s_mov_b64 exec, {(1<<38)-1:#x}" if False else f"s_mov_b32 exec_lo, -1", "s_mov_b32 exec_hi, 63")
    g.ds(f"ds_write_b128 v{t2}, {vr(vCP+24,4)}")
    I("s_mov_b64 exec, -1")
    vA, vB = vQR, vQR+1
    I(f"s_and_b32 s{sT2}, s{sW}, 1", f"s_lshl_b32 s{sT2}, s{sT2}, 8",
      f"v_and_b32 v{t0}, 15, v{vL}", f"v_and_b32 v{t1}, 48, v{vL}",
      f"s_add_u32 s{sT0}, s17, s{sT2}", f"s_add_u32 s{sT0}, s{sT0}, 480", f"v_add_u32 v{t2}, s{sT0}, v{t1}", f"v_lshlrev_b32 v{t3}, 5, v{t0}", f"v_sub_u32 v{vB}, v{t2}, v{t3}",
      f"v_sub_u32 v{t2}, 3, v{t0}", f"v_and_b32 v{t2}, 3, v{t2}", f"v_mul_u32_u24 v{t2}, {CSTR}, v{t2}", f"v_lshrrev_b32 v{t3}, 2, v{t0}", f"v_lshl_add_u32 v{t2}, v{t3}, 3, v{t2}",
      f"s_add_u32 s{sT0}, s16, s{sT2}", f"s_add_u32 s{sT0}, s{sT0}, 8", f"v_add3_u32 v{vA}, v{t2}, v{t1}, s{sT0}")
    g.wait(vm=tok_w2[20], ds=g.nds-1); I("s_barrier")
    stamp("Bb")
    vY = vACC
    vFR = 96
    def conv_reads(st):
        b = vFR + 64 * (st % 2); out = []
        for a in range(8):
            out.append(lambda a=a: g.ds(f"ds_read_b128 {vr(b+32+4*a,4)}, v{vB} offset:{512*(7-a)+64*st}"))
            for hh in range(2):
                out.append(lambda a=a, hh=hh: g.ds(f"ds_read_b64 {vr(b+4*a+2*hh,2)}, v{vA} offset:{64*st+512*a+8*hh}"))
        return out
    for f in conv_reads(0): tl = f()
    sFB = 18
    I(f"s_lshl_b32 s{sT0}, s{sR}, 2", f"s_add_u32 s{sT0}, s{sT0}, s{sW}", f"s_lshl_b32 s{sT0}, s{sT0}, 4", f"s_lshl_b32 s{sT1}, s{sE}, 3", f"s_add_u32 s{sT0}, s{sT0}, s{sT1}",
      f"s_add_u32 s{sT0}, s{sT0}, s{sJ}", f"s_lshl_b32 s{sT0}, s{sT0}, 7", f"s_add_u32 s{sFB}, s{sT0}, {FB_OFF}")
    for st in range(4):
        b = vFR + 64 * (st % 2)
        g.wait(ds=tl)
        rd = conv_reads(st + 1) if st < 3 else []
        sq = []
        if st == 0:
            for n in range(7): sq.append(w2_issue)
            for n in range(5): sq.append(held(14 + n))
        if st == 1:
            for n in range(5): sq.append(w2_issue)
        pairs = [(a, s - a) for s in range(8) for a in range(s + 1)]
        pairs.sort(key=lambda p: (p[0], p[1]))
        first = set()
        for idx, (a, bb) in enumerate(pairs):
            acc = vY + 4 * (a + bb)
            c = "0" if (st == 0 and (a + bb) not in first) else vr(acc, 4)
            first.add(a + bb)
            I(f"v_mfma_f32_16x16x32_bf16 {vr(acc,4)}, {vr(b+4*a,4)}, {vr(b+32+4*bb,4)}, {c}")
            if rd: tl = rd.pop(0)()
            elif sq: sq.pop(0)()
        while sq: sq.pop(0)()
        if st == 0:
            g.wait(ds=g.nds-1); I("s_barrier")
        if st == 1:
            g.wait(vm=tok["hst"]); flag_store(sFB)
            stamp("flagB")
    stamp("conv")
    lk = g.label("LK")
    I(f"s_and_b32 s{sT0}, s{sW}, 1", f"s_cmp_eq_u32 s{sT0}, 0", "s_nop 7", f"s_cbranch_scc1 {lk}")
    for k in range(16): I(f"v_swap_b32 v{vY+k}, v{vY+16+k}")
    I(f"{lk}:")
    I(f"s_lshl_b32 s{sT0}, s{sW}, 12", f"s_add_u32 s{sT0}, s{sT0}, {L_Z}", f"v_add_u32 v{t0}, s{sT0}, v{vL16}", f"v_xor_b32 v{t1}, 4096, v{t0}" if (L_Z & 4096) == 0 else
      f"s_xor_b32 s{sT1}, s{sW}, 1")
    if L_Z & 4096:
        I(f"s_lshl_b32 s{sT1}, s{sT1}, 12", f"s_add_u32 s19, s{sT1}, {L_Z}", f"v_add_u32 v{t1}, s19, v{vL16}")
    for k in range(4): g.ds(f"ds_write_b128 v{t0}, {vr(vY+16+4*k,4)} offset:{k*1024}")
    vU = vFR
    I(f"s_and_b32 s{sT2}, s{sW}, 1", f"s_lshl_b32 s{sT2}, s{sT2}, 11", f"s_sub_u32 s{sT0}, s17, s{sT2}", f"s_add_u32 s{sT0}, s{sT0}, {4088-1536}",
      f"v_and_b32 v{t2}, 15, v{vL}", f"v_lshlrev_b32 v{t2}, 5, v{t2}", f"v_lshrrev_b32 v{t3}, 4, v{vL}", f"v_lshl_add_u32 v{t4}, v{t3}, 3, v{t2}", f"v_sub_u32 v{t4}, s{sT0}, v{t4}")
    tu = [g.ds(f"ds_read_b64 {vr(vU+2*k,2)}, v{t4} offset:{1536-512*k}") for k in range(4)]
    I(f"v_and_b32 v{t4}, 1, v{t3}", f"v_lshl_add_u32 v{t2}, v{t4}, 9, v{t2}", f"v_lshrrev_b32 v{t3}, 1, v{t3}", f"v_lshl_add_u32 v{t2}, v{t3}, 4, v{t2}",
      f"s_lshl_b32 s{sT0}, s8, 12", f"s_add_u32 s{sT0}, s{sT0}, s{sT2}", f"s_add_u32 s12, s{sT0}, {YT_OFF}")
    I(f"s_and_b32 s{sT0}, s8, 1", f"s_lshl_b32 s{sT0}, s{sT0}, 4", f"v_lshrrev_b32 v{vT+9}, s{sT0}, v{vT+9}", f"v_lshlrev_b32 v{vT+9}, 16, v{vT+9}")
    g.wait(ds=g.nds-1); I("s_barrier")
    tx = [g.ds(f"ds_read_b128 {vr(vY+16+4*k,4)}, v{t1} offset:{k*1024}") for k in range(4)]
    vUF = vFR + 8
    for k in range(4):
        I(f"v_and_b32 v{vUF+4*k}, 0xffff0000, v{vU+2*k+1}", f"v_lshlrev_b32 v{vUF+4*k+1}, 16, v{vU+2*k+1}",
          f"v_and_b32 v{vUF+4*k+2}, 0xffff0000, v{vU+2*k}", f"v_lshlrev_b32 v{vUF+4*k+3}, 16, v{vU+2*k}")
    for k in range(16): I(f"v_fmac_f32 v{vY+k}, v{vUF+k}, v{vT+9}")
    g.wait(ds=tx[3])
    for k in range(8): I(f"v_pk_add_f32 {vr(vY+2*k,2)}, {vr(vY+2*k,2)}, {vr(vY+16+2*k,2)}")
    vYP = vFR + 24
    for k in range(8): I(f"v_cvt_pk_bf16_f32 v{vYP+k}, v{vY+2*k}, v{vY+2*k+1}")
    for pr in range(2):
        I(f"v_permlane16_swap_b32 v{vYP+4*pr}, v{vYP+4*pr+2}", f"v_permlane16_swap_b32 v{vYP+4*pr+1}, v{vYP+4*pr+3}")
    for pr in range(2):
        tok["yst"] = g.vm(f"buffer_store_dwordx4 {vr(vYP+4*pr,4)}, v{t2}, {sr(S_WS,4)}, s12 offen offset:{pr*1024} sc1")
    stamp("yst")
    I(f"s_lshl_b32 s{sT0}, s{sR}, 17", f"s_lshl_b32 s{sT1}, s{sE}, 16", f"s_add_u32 s{sT0}, s{sT0}, s{sT1}", f"s_lshl_b32 s{sT1}, s{sW}, 14", f"s_add_u32 s{sT0}, s{sT0}, s{sT1}",
      f"s_lshl_b32 s{sT1}, s{sJ}, 7", f"s_add_u32 s20, s{sT0}, s{sT1}",
      f"v_lshrrev_b32 v{t0}, 3, v{vL}", f"v_lshlrev_b32 v{t0}, 10, v{t0}", f"v_and_b32 v{t3}, 7, v{vL}", f"v_lshl_add_u32 v{vQG+2}, v{t3}, 4, v{t0}",
      f"v_lshrrev_b32 v{t4}, 4, v{vL}", f"v_xor_b32 v{t3}, v{t3}, v{t4}", f"v_lshl_add_u32 v{vQG}, v{t3}, 4, v{t0}",
      f"v_xor_b32 v{vQG+1}, 64, v{vQG}", f"v_add_u32 v{vQG+1}, 0x2000, v{vQG+1}", f"v_add_u32 v{vQG+3}, 0x2000, v{vQG+2}")
    for i in range(2):
        I(f"s_add_u32 m0, s19, {i*1024}")
        tok["x"] = g.vm(f"buffer_load_dwordx4 v{vQG+i}, {sr(S_Q,4)}, s20 offen lds")
    sFC = 21
    I(f"s_lshl_b32 s{sT0}, s{sX}, 1", f"s_and_b32 s{sT1}, s{sW}, 1", f"s_add_u32 s{sT0}, s{sT0}, s{sT1}", f"s_lshl_b32 s{sT0}, s{sT0}, 6", f"s_and_b32 s{sT1}, s8, 63",
      f"s_add_u32 s{sT0}, s{sT0}, s{sT1}", f"s_lshl_b32 s{sT0}, s{sT0}, 7", f"s_add_u32 s{sFC}, s{sT0}, {FC_OFF}")
    I(f"s_lshl_b32 s{sT0}, s9, 11", f"s_add_u32 s13, s{sT0}, {FB_OFF}", f"v_lshrrev_b32 v{vFA}, 2, v{vL}", f"v_lshlrev_b32 v{vFA}, 7, v{vFA}")
    tp = poll_issue(13)
    g.wait(vm=tp)
    flag_store(sFC)
    if stop <= 3:
        g.wait(vm=g.nvm-1); finish(); return g, stamp_regs
    poll_check(tp, 13)
    stamp("pollB")
    le = g.label("LE")
    I("s_cmp_lg_u32 s2, 0", f"s_cbranch_scc1 {le}")
    I(f"v_lshrrev_b32 v{t0}, 5, v{vL}", f"v_lshlrev_b32 v{t0}, 14, v{t0}", f"v_and_b32 v{t1}, 31, v{vL}", f"v_lshl_add_u32 v{vFA}, v{t1}, 7, v{t0}",
      f"s_lshl_b32 s{sT0}, s{sW}, 15", f"s_add_u32 s13, s{sT0}, {FA_OFF}", f"v_mov_b32 v{vFL}, 0", f"v_not_b32 v{vFL}, v{vNON}")
    sv = g.vm_done; poll_check(g.vm_done, 13); g.vm_done = sv
    I(f"{le}:")
    tok_h = {}
    h_next = [0]
    def h_issue():
        n = h_next[0]
        if n >= 43: return
        h_next[0] += 1
        tok_h[n] = g.vm(f"buffer_load_dwordx4 {ar(aH+4*(n%NHR),4)}, v{vL16}, {sr(S_WS,4)}, s{sHO} offen sc1")
        I(f"s_add_u32 s{sHO}, s{sHO}, 1024", f"s_cmp_ge_u32 s{sHO}, s{sHE}", f"s_cselect_b32 s{sHO}, s{sHS}, s{sHO}")
    for _ in range(NHR - 1): h_issue()
    I("s_barrier")
    le2 = g.label("LE")
    I(f"s_or_b32 s{sT0}, s2, s{sW}", f"s_cmp_lg_u32 s{sT0}, 0", f"s_cbranch_scc1 {le2}", f"s_mov_b32 s{sT1}, {E_OFF}", "s_mov_b64 exec, 1",
      f"buffer_store_dword v{vNON}, off, {sr(S_WS,4)}, s{sT1} sc1", "s_mov_b64 exec, -1", f"{le2}:")
    vO2 = vACC
    vW2F = 96
    trd = {}
    def lds_rd(n):
        if n < 43 and n >= NHELD: trd[n] = w2_read(n, vW2F + 8 * (n % 3), "v")
    vYL = 128
    for n in range(43):
        lds_rd(n + 2) if n + 2 >= NHELD else None
        g.wait(vm=tok_h[n], ds=trd.get(n))
        for tl in range(2):
            a = ar(aW2 + 8 * n + 4 * tl, 4) if n < NHELD else vr(vW2F + 8 * (n % 3) + 4 * tl, 4)
            c = "0" if n == 0 else vr(vO2 + 16 * tl, 16)
            I(f"v_mfma_f32_32x32x16_bf16 {vr(vO2+16*tl,16)}, {a}, {ar(aH+4*(n%NHR),4)}, {c}")
            if tl == 0: h_issue()
        if n == 27:
            I(f"s_lshl_b32 s{sT0}, s{sJ}, 1", f"s_lshr_b32 s{sT1}, s{sR}, 3", f"s_add_u32 s{sT0}, s{sT0}, s{sT1}", f"s_lshl_b32 s{sT0}, s{sT0}, 2", f"s_add_u32 s{sT0}, s{sT0}, s{sW}",
              f"s_lshl_b32 s{sT0}, s{sT0}, 11", f"s_add_u32 s13, s{sT0}, {FC_OFF}", f"v_lshrrev_b32 v{vFA}, 2, v{vL}", f"v_lshlrev_b32 v{vFA}, 7, v{vFA}")
            tpc = poll_issue(13)
    stamp("gemm2")
    poll_check(tpc, 13)
    I(f"s_lshl_b32 s{sT0}, s{sJ}, 18", f"s_lshl_b32 s{sT1}, s{sW}, 16", f"s_add_u32 s{sT0}, s{sT0}, s{sT1}", f"s_lshl_b32 s{sT1}, s{sR}, 8", f"s_add_u32 s{sT0}, s{sT0}, s{sT1}",
      f"s_lshl_b32 s{sT1}, s{sE}, 7", f"s_add_u32 s{sT0}, s{sT0}, s{sT1}", f"s_add_u32 s{sT0}, s{sT0}, {YT_OFF}",
      f"v_lshrrev_b32 v{t0}, 3, v{vL}", f"v_lshlrev_b32 v{t0}, 12, v{t0}", f"v_and_b32 v{t1}, 7, v{vL}", f"v_lshl_add_u32 v{t0}, v{t1}, 4, v{t0}", f"v_add_u32 v{t1}, 0x8000, v{t0}")
    g.vm(f"buffer_load_dwordx4 {vr(vYL,4)}, v{t0}, {sr(S_WS,4)}, s{sT0} offen sc1")
    ty = g.vm(f"buffer_load_dwordx4 {vr(vYL+4,4)}, v{t1}, {sr(S_WS,4)}, s{sT0} offen sc1")
    I(f"v_add_u32 v{t2}, s19, v{vL16}")
    I(f"s_and_b32 s{sT1}, s{sW}, 1", f"s_lshr_b32 s{sT2}, s{sW}, 1",
      f"v_bfe_u32 v{t3}, v{vL}, 4, 1", f"v_xor_b32 v{t3}, 1, v{t3}", f"v_lshlrev_b32 v{t3}, 12, v{t3}", f"v_and_b32 v{t4}, 15, v{vL}", f"v_lshl_add_u32 v{t3}, v{t4}, 7, v{t3}",
      f"v_bfe_u32 v{t4}, v{vL}, 1, 3", f"v_lshl_add_u32 v{t3}, v{t4}, 4, v{t3}", f"v_lshrrev_b32 v{t4}, 5, v{vL}", f"v_lshl_add_u32 v{t3}, v{t4}, 3, v{t3}",
      f"s_lshl_b32 s{sT3}, s{sT2}, 6", f"v_xor_b32 v{t3}, s{sT3}, v{t3}", f"s_lshl_b32 s{sT3}, s{sT1}, 13", f"s_add_u32 s{sT3}, s{sT3}, {L_Z}")
    vXA = vQR
    for q in range(4): I(f"v_xor_b32 v{vXA+q}, {16*q}, v{t3}", f"v_add_u32 v{vXA+q}, s{sT3}, v{vXA+q}")
    I(f"v_bfe_u32 v{t3}, v{vL}, 2, 2", f"v_lshl_add_u32 v{t3}, v{t4}, 2, v{t3}", f"v_lshlrev_b32 v{t3}, 7, v{t3}", f"v_and_b32 v{vT+5}, 16, v{vL}", f"v_lshl_add_u32 v{t3}, v{vT+5}, 1, v{t3}",
      f"v_and_b32 v{vT+5}, 3, v{vL}", f"v_lshl_add_u32 v{t3}, v{vT+5}, 3, v{t3}",
      f"s_lshl_b32 s{sT3}, s{sT2}, 13", f"s_lshl_b32 s{sT0}, s{sT1}, 6", f"s_add_u32 s{sT3}, s{sT3}, s{sT0}", f"s_add_u32 s{sT3}, s{sT3}, {L_Z+2048}", f"v_add_u32 v{vT+5}, s{sT3}, v{t3}")
    I(f"s_lshl_b32 s{sT0}, s{sE}, 9", f"s_lshl_b32 s{sT3}, s{sT1}, 8", f"s_add_u32 s{sT0}, s{sT0}, s{sT3}", f"s_add_u32 s{sT0}, s{sT0}, {L_STAT}",
      f"v_and_b32 v{t3}, 31, v{vL}", f"v_lshl_add_u32 v{vT+6}, v{t3}, 3, s{sT0}",
      f"s_mul_i32 s{sT0}, s{sW}, {32*PSTR}", f"s_add_u32 s{sT0}, s{sT0}, {L_PART}", f"v_mul_u32_u24 v{t3}, {PSTR}, v{t3}", f"v_lshl_add_u32 v{t3}, v{t4}, 4, v{t3}", f"v_add_u32 v{vT+7}, s{sT0}, v{t3}")
    I(f"s_mul_i32 s{sT0}, s{sW}, {16*PSTR}", f"s_add_u32 s{sT0}, s{sT0}, {L_PART}", f"v_lshrrev_b32 v{t3}, 3, v{vL}", f"v_mul_u32_u24 v{t3}, {PSTR}, v{t3}",
      f"v_and_b32 v{t4}, 7, v{vL}", f"v_lshl_add_u32 v{t3}, v{t4}, 5, v{t3}", f"v_add_u32 v{vT+8}, s{sT0}, v{t3}")
    g.wait(vm=ty)
    g.ds(f"ds_write_b128 v{t2}, {vr(vYL,4)} offset:2048"); g.ds(f"ds_write_b128 v{t2}, {vr(vYL+4,4)} offset:3072")
    g.wait(ds=g.nds-1); I("s_barrier")
    vXR, vYR, vST = 136, 144, 152
    g.ds(f"ds_read_b64 {vr(vST,2)}, v{vT+6}")
    for q in range(4): g.ds(f"ds_read_b64 {vr(vXR+2*q,2)}, v{vXA+q}")
    for q in range(4): tq = g.ds(f"ds_read_b64_tr_b16 {vr(vYR+2*q,2)}, v{vT+5} offset:{(4096 if q<2 else 0)+(q&1)*1024}")
    lk = g.label("LK")
    I(f"s_cmp_eq_u32 s{sT2}, 0", f"s_cbranch_scc1 {lk}")
    for k in range(16): I(f"v_swap_b32 v{vO2+k}, v{vO2+16+k}")
    I(f"{lk}:")
    I(f"s_lshl_b32 s{sT0}, s{sT2}, 7", f"v_add_u32 v{t0}, s{sT0}, v{vT+7}", f"s_xor_b32 s{sT0}, s{sT0}, 128", f"v_add_u32 v{t1}, s{sT0}, v{vT+7}")
    for q in range(4): g.ds(f"ds_write_b128 v{t1}, {vr(vO2+16+4*q,4)} offset:{32*q}")
    g.wait(ds=tq)
    vXF, vYF = 160, 176
    for k in range(8):
        I(f"v_lshlrev_b32 v{vXF+2*k}, 16, v{vXR+k}", f"v_and_b32 v{vXF+2*k+1}, 0xffff0000, v{vXR+k}",
          f"v_lshlrev_b32 v{vYF+2*k}, 16, v{vYR+k}", f"v_and_b32 v{vYF+2*k+1}, 0xffff0000, v{vYR+k}")
    for k in range(16):
        I(f"v_add_f32 v{vO2+k}, v{vO2+k}, v{vXF+k}", f"v_sub_f32 v{vXF+k}, v{vXF+k}, v{vST}", f"v_mul_f32 v{vYF+k}, v{vYF+k}, v{vST+1}", f"v_fmac_f32 v{vO2+k}, v{vXF+k}, v{vYF+k}")
    for q in range(4): g.ds(f"ds_write_b128 v{t0}, {vr(vO2+4*q,4)} offset:{32*q}")
    g.wait(ds=g.nds-1); I("s_barrier")
    vF0 = 96
    for i in range(2):
        for p in range(2):
            for h in range(2):
                tf = g.ds(f"ds_read_b128 {vr(vF0+16*i+8*p+4*h,4)}, v{vT+8} offset:{i*8*PSTR+p*64*PSTR+16*h}")
    g.wait(ds=tf)
    for i in range(2):
        for k in range(4): I(f"v_pk_add_f32 {vr(vF0+16*i+2*k,2)}, {vr(vF0+16*i+2*k,2)}, {vr(vF0+16*i+8+2*k,2)}")
        for k in range(4): I(f"v_cvt_pk_bf16_f32 v{vF0+32+4*i+k}, v{vF0+16*i+2*k}, v{vF0+16*i+2*k+1}")
        g.vm(f"buffer_store_dwordx4 {vr(vF0+32+4*i,4)}, v{vQG+2+i}, {sr(S_OUT,4)}, s20 offen")
    finish()
    return g, stamp_regs

HEADER = open("cdna_kernels/" + NAME + ".s.ref").read().split("; Override launch")[0] if len(sys.argv) > 0 else ""

def render(stop=99, stamps=False):
    g, names = gen(stop, stamps)
    body = pad_hazards(g.L)
    out = [HEADER.rstrip("\n"), f"; @launch grid=(256,1,1) block=(256,1,1) lds={LDS_BYTES}",
           '.amdgcn_target "amdgcn-amd-amdhsa--gfx950"', ".text", f".globl {NAME}_kernel", ".p2align 8", f".type {NAME}_kernel,@function", f"{NAME}_kernel:"]
    out += [("" if l.endswith(":") else "    ") + l for l in body]
    out.append(f""".section .rodata,"a"
.p2align 6
.amdhsa_kernel {NAME}_kernel
  .amdhsa_next_free_vgpr 512
  .amdhsa_next_free_sgpr 102
  .amdhsa_accum_offset 256
  .amdhsa_group_segment_fixed_size 0
  .amdhsa_kernarg_size 96
  .amdhsa_user_sgpr_count 2
  .amdhsa_user_sgpr_kernarg_segment_ptr 1
  .amdhsa_system_sgpr_workgroup_id_x 1
.end_amdhsa_kernel""")
    return "\n".join(out) + "\n", names

if __name__ == "__main__":
    import argparse
    ap = argparse.ArgumentParser()
    ap.add_argument("-o", default="cdna_kernels/" + NAME + ".s")
    ap.add_argument("--stop", type=int, default=99)
    ap.add_argument("--stamps", action="store_true")
    a = ap.parse_args()
    s, names = render(a.stop, a.stamps)
    open(a.o, "w").write(s)
    if a.stamps: open(a.o + ".names", "w").write("\n".join(names))
```

```python
import sys
from asmlib import *

NAME = "parallel_sum__ssm_conv_h3__dense_activation_silu__prompt"

H_OFF, KVT_OFF, YT_OFF = 0, 0x600000, 0x800000
FA_OFF, FB_OFF, FC_OFF, E_OFF, DBG_OFF = 0xA00000, 0xA20000, 0xA40000, 0xA60000, 0xB00000
WS_BYTES = 0x1000000
L_W1, L_Q = 0, 49152
L_SSM, CSTR = 98304, 4160
L_U, USTR = 131584, 4608
L_STAT, L_CS = 140800, 141824
L_Z = 143360
L_PART, PSTR = L_SSM, 272
LDS_BYTES = 163840
S_Q, S_K, S_V, S_W1, S_W1U, S_W2, S_SSM, S_WS, S_WSU, S_OUT = 28, 32, 36, 40, 44, 48, 52, 56, 60, 64
sX, sC, sW, sR, sJ, sE, sNON, sUS, sKAP, sOQ, sOW, sWK = 68, 69, 70, 71, 72, 73, 74, 75, 76, 77, 78, 79
sT0, sT1, sT2, sT3 = 80, 81, 82, 83
sW2O, sW2S, sW2E, sHO, sHS, sHE = 84, 85, 86, 87, 88, 89
sSPIN, sW3K, sHST, sHST2 = 90, 91, 92, 93
sCH, sS32 = 8, 9
sPSH, sPD = 10, 14
sKVS, sFA, sPA, sPB, sPC, sFB, sFC, sYS, sKVL, sYL, sZP, sTILE, sKVM, sW1b, sW0b = 12, 13, 16, 17, 18, 19, 20, 21, 22, 23, 24, 25, 26, 27, 3

class Opt:
    stop = 99; stamps = False

def gen(o):
    g = Gen(); I = g.I
    stamp_regs = []
    def stamp(name):
        if not o.stamps: return
        idx = len(stamp_regs); stamp_regs.append(name)
        I("s_memtime s[94:95]", "s_waitcnt lgkmcnt(0)", f"v_writelane_b32 v255, s94, {idx}")
        g.ds_done = g.nds - 1
    def finish():
        if o.stamps:
            stamp("end")
            I("s_memrealtime s[94:95]", "s_waitcnt lgkmcnt(0)", "v_writelane_b32 v255, s94, 62", f"v_writelane_b32 v255, s96, 63")
            I(f"s_lshl_b32 s{sT0}, s2, 2", f"s_add_u32 s{sT0}, s{sT0}, s{sW}", f"s_lshl_b32 s{sT0}, s{sT0}, 8", f"s_add_u32 s{sT0}, s{sT0}, {DBG_OFF}")
            I("v_lshlrev_b32 v254, 2, v1")
            g.vm(f"buffer_store_dword v255, v254, {sr(S_WS,4)}, s{sT0} offen")
        I("LEND:", "s_endpgm")

    class Q:
        def __init__(s): s.q = []
        def add(s, *x): s.q.extend(x)
        def pop(s, n=1):
            k = 0
            while s.q and k < n:
                x = s.q.pop(0); k += 1
                if callable(x): x()
                else: I(x)
            return k
        def flush(s): s.pop(10**9)
        def __len__(s): return len(s.q)
    def gap(budget, *qs):
        for q, mx in qs:
            budget -= q.pop(min(budget, mx))
            if budget <= 0: break

    vL = 1
    vQG = 2
    vW1G = 6
    vL16 = 7
    vQR = 8
    vW1R = 12
    vW2G = 16
    vW2R = 20
    vT = 26
    vMASK = 32
    vSUM = 36
    vCS = 40
    vSQ = 52
    vNON, vFL = 56, 57
    vF1, vF2 = 58, 59
    vC1 = 60
    vSD = 62
    vACC = 64
    vQF = 112
    vWF = 144
    vX = 180
    vP = 224
    (pKTR, pKSW, pKSR, pKG0, pKG1, pCSW, pCSR, pSTW, pSSM, pCW, pUW, pZW, pA, pB, pEXW, pEXR, pUR, pYS, pD,
     pYG0, pYG1, pXA, pXA1, pXA2, pXA3, pYR, pSTR, pPW, pFR) = range(vP, vP + 29)
    t0, t1, t2, t3, t4, t5 = range(vT, vT + 6)

    I(f"s_cmp_ge_u32 s2, 256", "s_cbranch_scc1 LEND")
    if o.stamps:
        I("s_memrealtime s[96:97]"); stamp("entry")
    for srd, off in ((S_Q, 0), (S_W1, 56), (S_W1U, 56), (S_K, 8), (S_V, 16), (sPSH, 24), (S_WS, 88), (S_WSU, 88), (S_SSM, 32), (sPD, 40), (S_W2, 64), (S_OUT, 72)):
        I(f"s_load_dwordx2 {sr(srd,2)}, s[0:1], {off}")
    I("s_getpc_b64 s[4:5]", "LPC:")
    I(f"v_and_b32 v{vL}, 63, v0", f"v_lshrrev_b32 v{t0}, 6, v0")
    I(f"s_and_b32 s{sX}, s2, 7", f"s_lshr_b32 s{sC}, s2, 3")
    I(f"v_readfirstlane_b32 s{sW}, v{t0}")
    I(f"s_lshl_b32 s{sT0}, s{sC}, 2", f"s_add_u32 s{sT0}, s{sT0}, s{sW}", f"s_lshl_b32 s{sT0}, s{sT0}, 8")
    I(f"v_lshlrev_b32 v{t0}, 7, v{vL}", f"v_add_u32 v{t0}, s{sT0}, v{t0}", f"v_min_u32 v{t0}, LEND-LPC, v{t0}")
    I("s_mov_b64 exec, 3")
    g.vm(f"global_load_dword v{vFL}, v{t0}, s[4:5]")
    I("s_mov_b64 exec, -1")
    I(f"s_mov_b32 s{S_K+3}, 0x20000", f"s_mov_b32 s{S_K+2}, 0x200000")
    for srd in (S_V, S_Q): I(f"s_mov_b32 s{srd+3}, s{S_K+3}", f"s_mov_b32 s{srd+2}, s{S_K+2}")
    I(f"s_mov_b32 s{S_W1+3}, s{S_K+3}", f"s_mov_b32 s{S_W1+2}, {512*1376*2}", f"s_mov_b32 s{S_W1U+3}, s{S_K+3}")
    I(f"s_and_b32 s{sE}, s{sX}, 1", f"s_and_b32 s{sJ}, s{sC}, 7", f"s_lshr_b32 s{sT0}, s{sC}, 3",
      f"s_lshr_b32 s{sR}, s{sX}, 1", f"s_lshl_b32 s{sR}, s{sR}, 2", f"s_add_u32 s{sR}, s{sR}, s{sT0}")
    I(f"s_lshl_b32 s{sKAP}, s{sT0}, 1", f"s_add_u32 s{sKAP}, s{sKAP}, s{sJ}", f"s_and_b32 s{sKAP}, s{sKAP}, 7")
    I(f"s_mul_i32 s{sUS}, s{sE}, 22", f"s_mul_i32 s{sT1}, s{sJ}, 3", f"s_add_u32 s{sUS}, s{sUS}, s{sT1}",
      f"s_add_u32 s{sT1}, s{sJ}, s{sE}", f"s_max_u32 s{sT2}, s{sT1}, 6", f"s_sub_u32 s{sT2}, s{sT2}, 6", f"s_sub_u32 s{sUS}, s{sUS}, s{sT2}",
      f"s_cmp_lt_u32 s{sT1}, 6", f"s_cselect_b32 s{S_W1U+2}, s{S_W1+2}, 0", f"s_cselect_b32 s{S_WSU+2}, {WS_BYTES}, 0")
    I(f"s_lshl_b32 s{sWK}, s{sW}, 10", f"s_mul_i32 s{sW3K}, s{sW}, 3072", f"s_and_b32 s{sW0b}, s{sW}, 1", f"s_lshr_b32 s{sW1b}, s{sW}, 1")
    I(f"v_lshrrev_b32 v{t1}, 3, v{vL}", f"v_lshlrev_b32 v{t1}, 10, v{t1}", f"v_and_b32 v{t2}, 7, v{vL}", f"v_lshl_add_u32 v{t3}, v{t2}, 4, v{t1}",
      f"v_lshrrev_b32 v{t4}, 4, v{vL}", f"v_xor_b32 v{t4}, v{t2}, v{t4}", f"v_lshl_add_u32 v{t4}, v{t4}, 4, v{t1}")
    I(f"s_lshl_b32 s{sT0}, s{sR}, 17", f"s_lshl_b32 s{sT1}, s{sW}, 15", f"s_add_u32 s{sT0}, s{sT0}, s{sT1}")
    I(f"v_add_u32 v{vQG}, s{sT0}, v{t4}", f"v_xor_b32 v{vQG+1}, 64, v{vQG}", f"v_add_u32 v{vQG+1}, 0x2000, v{vQG+1}",
      f"v_add_u32 v{vQG+2}, 0x4000, v{vQG}", f"v_add_u32 v{vQG+3}, 0x4000, v{vQG+1}")
    I(f"s_lshl_b32 s{sT0}, s{sW}, 4", f"v_lshrrev_b32 v{t5}, 2, v{vL}", f"v_add_u32 v{t5}, s{sT0}, v{t5}",
      f"v_mul_u32_u24 v{t5}, 2752, v{t5}", f"v_and_b32 v{t0}, 3, v{vL}", f"v_lshl_add_u32 v{t5}, v{t0}, 4, v{t5}",
      f"s_lshl_b32 s{sT0}, s{sUS}, 6", f"v_add_u32 v{vW1G}, s{sT0}, v{t5}")
    I(f"s_lshl_b32 s{sT0}, s{sC}, 16", f"s_lshl_b32 s{sT1}, s{sW}, 14", f"s_add_u32 s{sT0}, s{sT0}, s{sT1}",
      f"s_lshl_b32 s{sT1}, s{sX}, 7", f"s_add_u32 s{sT0}, s{sT0}, s{sT1}",
      f"v_add_u32 v{vX+1}, s{sT0}, v{t3}", f"v_add_u32 v{vX}, 0xffffe000, v{vX+1}", f"v_add_u32 v{vX+2}, 0x2000, v{vX+1}",
      f"s_lshl_b32 s{sT1}, s{sX}, 9", f"v_lshl_add_u32 v{vX+3}, v{vL}, 3, s{sT1}",
      f"s_mul_i32 s{sKVM}, s{sW}, 5120", f"s_add_u32 s{sKVM}, s{sKVM}, {L_Z}")
    I(f"v_mov_b32 v{pYG0}, v{t3}", f"v_mov_b32 v{pYG1}, v{t4}")

    tok_chunk = {}
    def chunk_items(i):
        w, q = [], []
        w += [f"s_lshl_b32 s{sOQ}, s{sKAP}, 7", f"s_mul_i32 s{sOW}, s{sKAP}, {64*2752}", f"s_add_u32 s{sKAP}, s{sKAP}, 1"]
        for u in range(3):
            w.append(f"s_add_u32 m0, s{sW3K}, {L_W1 + (i%4)*12288 + u*1024 - u*64}")
            if u == 0: w.append(f"s_and_b32 s{sKAP}, s{sKAP}, 7")
            w.append(lambda u=u: g.vm(f"buffer_load_dwordx4 v{vW1G}, {sr(S_W1U if u==2 else S_W1,4)}, s{sOW} offen offset:{u*64} lds"))
        for k in range(4):
            q.append(f"s_add_u32 m0, s{sWK}, {L_Q + (i%3)*16384 + k*4096}")
            def f(k=k):
                t = g.vm(f"buffer_load_dwordx4 v{vQG+k}, {sr(S_Q,4)}, s{sOQ} offen lds")
                if k == 3: tok_chunk[i] = t
            q.append(f)
        return w, q
    def emit(items):
        for x in items:
            if callable(x): x()
            else: I(x)

    S = []
    A = lambda *x: S.extend(x)
    A(f"s_mov_b32 s{S_WS+3}, s{S_K+3}", f"s_mov_b32 s{S_WS+2}, {WS_BYTES}", f"s_mov_b32 s{S_WSU+3}, s{S_K+3}",
      f"s_mov_b32 s{S_W2+3}, s{S_K+3}", f"s_mov_b32 s{S_W2+2}, s{S_W1+2}",
      f"s_mov_b32 s{S_OUT+3}, s{S_K+3}", f"s_mov_b32 s{S_OUT+2}, s{S_K+2}",
      f"s_mov_b32 s{S_SSM+3}, s{S_K+3}", f"s_mov_b32 s{S_SSM+2}, 4096")
    A(f"v_lshlrev_b32 v{vL16}, 4, v{vL}")
    A(f"v_and_b32 v{t0}, 16, v{vL}", f"v_lshlrev_b32 v{t0}, 1, v{t0}", f"v_and_b32 v{t1}, 3, v{vL}", f"v_lshl_add_u32 v{t5}, v{t1}, 3, v{t0}",
      f"v_lshrrev_b32 v{t0}, 5, v{vL}", f"v_bfe_u32 v{t1}, v{vL}, 2, 2")
    A(f"v_lshl_add_u32 v{t2}, v{t0}, 3, v{t1}", f"v_lshl_add_u32 v{t2}, v{t2}, 6, v{t5}")
    A(f"v_bfe_u32 v{t3}, v{vL}, 3, 2", f"v_lshlrev_b32 v{t3}, 12, v{t3}", f"v_and_b32 v{t4}, 7, v{vL}", f"v_lshl_add_u32 v{t3}, v{t4}, 7, v{t3}",
      f"s_add_u32 s{sT0}, s{sWK}, {L_Q}", f"v_add_u32 v{t3}, s{sT0}, v{t3}",
      f"v_bfe_u32 v{t4}, v{vL}, 1, 3", f"v_xor_b32 v{t4}, v{t4}, v{t0}", f"v_lshl_add_u32 v{t3}, v{t4}, 4, v{t3}")
    for i in range(4):
        A(f"s_add_u32 s{sT0}, s{sW}, {i}", f"s_and_b32 s{sT0}, s{sT0}, 3", f"s_mul_i32 s{sT1}, s{sT0}, 3072", f"s_lshl_b32 s{sT0}, s{sT0}, 5",
          f"v_add_u32 v{vW1R+i}, s{sT1}, v{t2}", f"v_xor_b32 v{vQR+i}, s{sT0}, v{t3}")
    A(f"v_lshrrev_b32 v{t2}, 4, v{vL}", f"v_xor_b32 v{t2}, v{t2}, v{vL}", f"v_and_b32 v{t2}, 1, v{t2}", f"v_cmp_eq_u32 vcc, 0, v{t2}",
      f"v_mov_b32 v{t3}, 0x3f803f80", f"v_mov_b32 v{vSQ}, 0", f"v_cndmask_b32 v{vMASK}, 0, v{t3}, vcc")
    for i in range(1, 4): A(f"v_mov_b32 v{vMASK+i}, v{vMASK}", f"v_mov_b32 v{vSQ+i}, 0")
    A(f"v_lshl_add_u32 v{t2}, v{t1}, 7, v{t5}", f"v_lshl_add_u32 v{t2}, v{t0}, 6, v{t2}", f"v_add_u32 v{pKTR}, s{sKVM}, v{t2}")
    A(f"v_lshl_add_u32 v{t2}, v{t0}, 2, v{t1}", f"v_lshl_add_u32 v{pYR}, v{t2}, 7, v{t5}",
      f"v_and_b32 v{t3}, 8, v{vL}", f"v_lshl_add_u32 v{t2}, v{t3}, 3, v{pYR}",
      f"s_mul_i32 s{sT0}, s{sW1b}, {2048+64}", f"v_xor_b32 v{vW2R}, s{sT0}, v{t2}", f"v_xor_b32 v{vW2R+1}, 64, v{vW2R}")
    for k in (1, 2): A(f"v_add_u32 v{vW2R+2*k}, {49152*k}, v{vW2R}", f"v_add_u32 v{vW2R+2*k+1}, {49152*k}, v{vW2R+1}")
    A(f"s_lshl_b32 s{sT0}, s{sW1b}, 13", f"s_lshl_b32 s{sT1}, s{sW0b}, 6", f"s_add_u32 s{sT0}, s{sT0}, s{sT1}", f"s_add_u32 s{sT0}, s{sT0}, {L_Z+2048}", f"v_add_u32 v{pYR}, s{sT0}, v{pYR}")
    A(f"s_lshl_b32 s{sT0}, s{sW0b}, 13", f"s_lshl_b32 s{sT1}, s{sJ}, 7", f"s_add_u32 s{sT0}, s{sT0}, s{sT1}",
      f"v_and_b32 v{t3}, 16, v{vL}", f"v_lshlrev_b32 v{t3}, 2, v{t3}", f"v_xor_b32 v{t2}, v{pYG0}, v{t3}", f"v_add_u32 v{vW2G}, s{sT0}, v{t2}")
    for k in range(1, 4): A(f"v_add_u32 v{vW2G+k}, {16384*k}, v{vW2G}")
    A(f"s_and_b32 s{sT1}, s{sR}, 3", f"s_mul_i32 s{sT1}, s{sT1}, 3", f"s_add_u32 s{sT0}, s{sJ}, s{sT1}",
      f"s_sub_u32 s{sT1}, s{sT0}, 10", f"s_min_u32 s{sT0}, s{sT0}, s{sT1}",
      f"s_mul_i32 s{sT1}, s{sW1b}, 43",
      f"s_lshl_b32 s{sW2S}, s{sT1}, 14", f"s_add_u32 s{sW2E}, s{sW2S}, {40*16384}",
      f"s_lshl_b32 s{sT2}, s{sT0}, 16", f"s_add_u32 s{sW2O}, s{sW2S}, s{sT2}",
      f"s_lshl_b32 s{sT2}, s{sR}, 2", f"s_lshl_b32 s{sT3}, s{sE}, 1", f"s_add_u32 s{sT3}, s{sT2}, s{sT3}", f"s_add_u32 s{sS32}, s{sT3}, s{sW0b}",
      f"s_mul_i32 s{sT3}, s{sS32}, 86", f"s_add_u32 s{sT3}, s{sT3}, s{sT1}", f"s_lshl_b32 s{sHS}, s{sT3}, 10",
      f"s_add_u32 s{sHE}, s{sHS}, {40*1024}", f"s_lshl_b32 s{sT3}, s{sT0}, 12", f"s_add_u32 s{sHO}, s{sHS}, s{sT3}",
      f"s_add_u32 s{sT2}, s{sT2}, s{sW}",
      f"s_mul_i32 s{sT3}, s{sT2}, 86", f"s_lshl_b32 s{sT0}, s{sUS}, 1", f"s_add_u32 s{sT3}, s{sT3}, s{sT0}", f"s_lshl_b32 s{sHST}, s{sT3}, 10", f"s_add_u32 s{sHST2}, s{sHST}, 4096",
      f"s_lshl_b32 s{sT2}, s{sT2}, 4", f"s_lshl_b32 s{sT3}, s{sE}, 3", f"s_add_u32 s{sT2}, s{sT2}, s{sT3}", f"s_add_u32 s{sT2}, s{sT2}, s{sJ}", f"s_lshl_b32 s{sT2}, s{sT2}, 7", f"s_add_u32 s{sFB}, s{sT2}, {FB_OFF}",
      f"s_lshl_b32 s{sT2}, s{sS32}, 11", f"s_add_u32 s{sPB}, s{sT2}, {FB_OFF}")
    A(f"s_lshl_b32 s{sT0}, s{sX}, 6", f"s_lshl_b32 s{sT1}, s{sC}, 1", f"s_add_u32 s{sT1}, s{sT1}, s{sW1b}", f"s_add_u32 s{sCH}, s{sT0}, s{sT1}",
      f"s_lshl_b32 s{sT2}, s{sX}, 1", f"s_add_u32 s{sT2}, s{sT2}, s{sW0b}", f"s_lshl_b32 s{sT2}, s{sT2}, 6", f"s_add_u32 s{sT2}, s{sT2}, s{sT1}", f"s_lshl_b32 s{sT2}, s{sT2}, 7", f"s_add_u32 s{sFC}, s{sT2}, {FC_OFF}",
      f"s_lshl_b32 s{sT0}, s{sCH}, 12", f"s_add_u32 s{S_SSM}, s{S_SSM}, s{sT0}", f"s_addc_u32 s{S_SSM+1}, s{S_SSM+1}, 0",
      f"s_lshl_b32 s{sT1}, s{sW0b}, 11", f"s_add_u32 s{sT0}, s{sT0}, s{sT1}", f"s_add_u32 s{sKVL}, s{sT0}, {KVT_OFF}", f"s_add_u32 s{sYS}, s{sT0}, {YT_OFF}",
      f"v_add_u32 v{pSSM}, s{sT1}, v{vL16}",
      f"s_mul_i32 s{sT2}, s{sW1b}, {4*CSTR}", f"s_add_u32 s{sT2}, s{sT2}, {L_SSM}",
      f"s_mul_i32 s{sT3}, s{sW1b}, {USTR}", f"s_add_u32 s{sT3}, s{sT3}, {L_U}",
      f"v_add_u32 v{pCW}, s{sT2}, v{pSSM}", f"v_add_u32 v{pUW}, s{sT3}, v{pSSM}",
      f"v_lshrrev_b32 v{t2}, 1, v{vL}", f"v_lshlrev_b32 v{vF1}, 7, v{t2}", f"v_mul_u32_u24 v{t2}, {CSTR}, v{t2}", f"v_and_b32 v{t3}, 1, v{vL}", f"v_lshl_add_u32 v{t2}, v{t3}, 4, v{t2}", f"v_add_u32 v{t2}, s{sT2}, v{t2}",
      f"s_add_u32 s{sT0}, s{sT3}, {4096-128}", f"v_add_u32 v{t3}, s{sT0}, v{vL16}", f"v_cmp_gt_u32 vcc, 8, v{vL}", f"v_lshrrev_b32 v{vF2}, 2, v{vL}", f"v_lshlrev_b32 v{vF2}, 7, v{vF2}", f"v_cndmask_b32 v{pZW}, v{t3}, v{t2}, vcc",
      f"s_lshl_b32 s{sT0}, s{sW0b}, 8", f"v_and_b32 v{t2}, 15, v{vL}", f"v_and_b32 v{t3}, 48, v{vL}",
      f"s_add_u32 s{sT1}, s{sT3}, s{sT0}", f"s_add_u32 s{sT1}, s{sT1}, 480", f"v_add_u32 v{t4}, s{sT1}, v{t3}", f"v_lshlrev_b32 v{pYS}, 5, v{t2}", f"v_sub_u32 v{pB}, v{t4}, v{pYS}",
      f"v_sub_u32 v{t4}, 3, v{t2}", f"v_and_b32 v{t4}, 3, v{t4}", f"v_mul_u32_u24 v{t4}, {CSTR}, v{t4}", f"v_lshrrev_b32 v{t2}, 2, v{t2}", f"v_lshl_add_u32 v{t4}, v{t2}, 3, v{t4}",
      f"s_add_u32 s{sT1}, s{sT2}, s{sT0}", f"s_add_u32 s{sT1}, s{sT1}, 8", f"v_add3_u32 v{pA}, v{t4}, v{t3}, s{sT1}",
      f"s_lshl_b32 s{sT0}, s{sW0b}, 11", f"s_sub_u32 s{sT0}, s{sT3}, s{sT0}", f"s_add_u32 s{sT0}, s{sT0}, {4088-1536}", f"v_lshrrev_b32 v{t3}, 1, v{t3}", f"v_add_u32 v{t3}, v{t3}, v{pYS}", f"v_sub_u32 v{pUR}, s{sT0}, v{t3}",
      f"v_and_b32 v{t3}, 16, v{vL}", f"v_lshl_add_u32 v{pYS}, v{t3}, 5, v{pYS}", f"v_lshl_add_u32 v{pYS}, v{t0}, 4, v{pYS}",
      f"s_lshl_b32 s{sT0}, s{sW}, 12", f"s_add_u32 s{sT0}, s{sT0}, {L_Z}", f"v_add_u32 v{pEXW}, s{sT0}, v{vL16}",
      f"s_xor_b32 s{sT0}, s{sW}, 1", f"s_lshl_b32 s{sT0}, s{sT0}, 12", f"s_add_u32 s{sZP}, s{sT0}, {L_Z}", f"v_add_u32 v{pEXR}, s{sZP}, v{vL16}")
    A(f"s_lshl_b32 s{sT0}, s{sW}, 5", f"s_sub_u32 s{sT0}, {L_U+96}, s{sT0}", f"v_mul_u32_u24 v{t2}, 144, v{vL}", f"v_add_u32 v{pKSW}, s{sT0}, v{t2}",
      f"s_lshl_b32 s{sT0}, s{sW}, 4", f"v_lshrrev_b32 v{t2}, 3, v{vL}", f"v_add_u32 v{t3}, s{sT0}, v{t2}", f"v_and_b32 v{t4}, 7, v{vL}", f"v_lshlrev_b32 v{t4}, 4, v{t4}",
      f"v_mul_u32_u24 v{pKSR}, 144, v{t3}", f"v_add_u32 v{pKSR}, v{pKSR}, v{t4}", f"v_add_u32 v{pKSR}, {L_U}, v{pKSR}",
      f"v_lshl_add_u32 v{pKG0}, v{t3}, 12, v{t4}", f"v_add_u32 v{pKG1}, 0x8000, v{pKG0}",
      f"s_lshl_b32 s{sT0}, s{sX}, 18", f"s_lshl_b32 s{sT1}, s{sC}, 7", f"s_sub_u32 s{sT0}, s{sT0}, s{sT1}", f"s_add_u32 s{sKVS}, s{sT0}, {KVT_OFF+3968}",
      f"v_mul_u32_u24 v{pFR}, {PSTR}, v{t3}", f"v_lshl_add_u32 v{pFR}, v{t4}, 1, v{pFR}", f"v_add_u32 v{pFR}, {L_PART}, v{pFR}",
      f"s_lshl_b32 s{sT0}, s{sX}, 2", f"s_add_u32 s{sT1}, s{sT0}, s{sW}", f"s_lshl_b32 s{sT1}, s{sT1}, 5", f"s_add_u32 s{sT1}, s{sT1}, s{sC}", f"s_lshl_b32 s{sT1}, s{sT1}, 7", f"s_add_u32 s{sFA}, s{sT1}, {FA_OFF}",
      f"s_lshr_b32 s{sT1}, s{sC}, 3", f"s_add_u32 s{sT0}, s{sT0}, s{sT1}", f"s_lshl_b32 s{sT0}, s{sT0}, 12", f"s_add_u32 s{sPA}, s{sT0}, {FA_OFF}",
      f"s_lshl_b32 s{sT0}, s{sJ}, 1", f"s_lshr_b32 s{sT1}, s{sR}, 3", f"s_add_u32 s{sT0}, s{sT0}, s{sT1}", f"s_lshl_b32 s{sT0}, s{sT0}, 2", f"s_add_u32 s{sT0}, s{sT0}, s{sW}", f"s_lshl_b32 s{sT0}, s{sT0}, 11", f"s_add_u32 s{sPC}, s{sT0}, {FC_OFF}",
      f"s_lshl_b32 s{sT0}, s{sJ}, 18", f"s_lshl_b32 s{sT1}, s{sR}, 8", f"s_add_u32 s{sT0}, s{sT0}, s{sT1}", f"s_lshl_b32 s{sT1}, s{sE}, 7", f"s_add_u32 s{sT0}, s{sT0}, s{sT1}", f"s_add_u32 s{sYL}, s{sT0}, {YT_OFF}",
      f"s_lshl_b32 s{sT0}, s{sR}, 17", f"s_lshl_b32 s{sT1}, s{sE}, 16", f"s_add_u32 s{sT0}, s{sT0}, s{sT1}", f"s_lshl_b32 s{sT1}, s{sW}, 14", f"s_add_u32 s{sT0}, s{sT0}, s{sT1}",
      f"s_lshl_b32 s{sT1}, s{sJ}, 7", f"s_add_u32 s{sTILE}, s{sT0}, s{sT1}")
    A(f"v_and_b32 v{t2}, 31, v{vL}", f"v_lshlrev_b32 v{t3}, 4, v{t2}", f"v_add_u32 v{pCSR}, {L_CS}, v{t3}", f"s_lshl_b32 s{sT0}, s{sW}, 2", f"v_add_u32 v{pCSW}, s{sT0}, v{pCSR}",
      f"s_lshl_b32 s{sT0}, s{sW}, 8", f"s_add_u32 s{sT0}, s{sT0}, {L_STAT}", f"v_lshl_add_u32 v{pSTW}, v{t2}, 3, s{sT0}",
      f"s_lshl_b32 s{sT0}, s{sE}, 9", f"s_lshl_b32 s{sT1}, s{sW0b}, 8", f"s_add_u32 s{sT0}, s{sT0}, s{sT1}", f"s_add_u32 s{sT0}, s{sT0}, {L_STAT}", f"v_lshl_add_u32 v{pSTR}, v{t2}, 3, s{sT0}",
      f"s_mul_i32 s{sT0}, s{sW}, {32*PSTR}", f"s_add_u32 s{sT0}, s{sT0}, {L_PART}", f"v_mul_u32_u24 v{t3}, {PSTR}, v{t2}", f"v_lshl_add_u32 v{t3}, v{t0}, 4, v{t3}", f"v_add_u32 v{pPW}, s{sT0}, v{t3}",
      f"v_bfe_u32 v{t3}, v{vL}, 4, 1", f"v_xor_b32 v{t3}, 1, v{t3}", f"v_lshlrev_b32 v{t3}, 12, v{t3}", f"v_and_b32 v{t4}, 15, v{vL}", f"v_lshl_add_u32 v{t3}, v{t4}, 7, v{t3}",
      f"v_bfe_u32 v{t4}, v{vL}, 1, 3", f"v_lshl_add_u32 v{t3}, v{t4}, 4, v{t3}", f"v_lshl_add_u32 v{t3}, v{t0}, 3, v{t3}",
      f"s_lshl_b32 s{sT0}, s{sW1b}, 6", f"v_xor_b32 v{t3}, s{sT0}, v{t3}", f"s_lshl_b32 s{sT1}, s{sW0b}, 13", f"s_add_u32 s{sT1}, s{sT1}, {L_Z}")
    for q in range(4): A(f"v_xor_b32 v{pXA+q}, {16*q}, v{t3}", f"v_add_u32 v{pXA+q}, s{sT1}, v{pXA+q}")
    A(f"s_lshr_b32 s{sT0}, s{sCH}, 1", f"s_lshl_b32 s{sT0}, s{sT0}, 2", f"v_mov_b32 v{pD}, s{sT0}")

    NPRE = o.npre
    pre_part = [x for x in S[:NPRE]]
    assert not any(f"s{S_SSM}," in x for x in pre_part)
    emit(pre_part)
    I("s_waitcnt lgkmcnt(0)")
    stamp("kernarg")
    a, b = chunk_items(0); emit(a + b)
    I(f"s_add_u32 s6, s{S_WS}, {E_OFF}", f"s_addc_u32 s7, s{S_WS+1}, 0", f"s_load_dword s{sNON}, s[6:7], 0")
    for i in range(3):
        I(f"s_add_u32 m0, s{sKVM}, {i*1024}"); g.vm(f"buffer_load_dwordx4 v{vX+i}, {sr(S_K,4)}, 0 offen lds")
    rest = S[NPRE:]
    emit(rest)
    for i in range(2):
        I(f"s_add_u32 m0, s{sKVM}, {(3+i)*1024}"); g.vm(f"buffer_load_dwordx4 v{vX+1+i}, {sr(S_V,4)}, 0 offen lds")
    tok_kv = g.vm(f"global_load_dwordx2 {vr(vX+4,2)}, v{vX+3}, {sr(sPSH,2)}")
    I("s_waitcnt lgkmcnt(0)")
    I(f"s_mul_i32 s{sNON}, s{sNON}, 1664525", f"s_add_u32 s{sNON}, s{sNON}, 1013904223", f"v_mov_b32 v{vNON}, s{sNON}")
    a, b = chunk_items(1); emit(a + b)
    stamp("issued")

    def flag_items(sreg):
        return ["s_mov_b64 exec, 1", lambda: g.vm(f"buffer_store_dword v{vNON}, off, {sr(S_WS,4)}, s{sreg} sc1"), "s_mov_b64 exec, -1"]
    def flag_store(sreg): emit(flag_items(sreg))
    def poll_issue(sreg, va):
        return g.vm(f"buffer_load_dword v{vFL}, v{va}, {sr(S_WS,4)}, s{sreg} offen sc1")
    def poll_check(tok, sreg, va):
        ok, lp = g.label("LOK"), g.label("LPOLL")
        g.wait(vm=tok)
        I(f"v_cmp_ne_u32 vcc, s{sNON}, v{vFL}", "s_nop 1", f"s_cbranch_vccz {ok}", f"s_mov_b32 s{sSPIN}, 400000",
          f"{lp}:", f"buffer_load_dword v{vFL}, v{va}, {sr(S_WS,4)}, s{sreg} offen sc1", f"s_sub_u32 s{sSPIN}, s{sSPIN}, 1", "s_waitcnt vmcnt(0)",
          f"s_cbranch_scc1 {ok}", f"v_cmp_ne_u32 vcc, s{sNON}, v{vFL}", "s_nop 1", f"s_cbranch_vccnz {lp}", f"{ok}:")

    G0 = list(range(24, 32))
    G1 = [0, 1, 2, 20, 21, 22, 23]; G2 = [3, 4, 5, 12, 13, 14, 15]; G3 = [6, 7, 8, 16, 17, 18, 19]; G4 = [9, 10, 11]
    slot_unit = G0 + G1 + G2 + G3 + G4 + G1 + G2[:4]
    assert len(slot_unit) == 43
    NHELD = 19
    aW2, aH, NHR = 0, 152, 16
    w2_next = [0]; tok_w2 = {}
    def w2_items(cnt):
        out = []
        for _ in range(cnt):
            n = w2_next[0]; w2_next[0] += 1
            out.append(f"s_add_u32 m0, s{sWK}, {slot_unit[n]*4096}")
            if n == 40: out.append(f"s_mov_b32 s{sW2O}, s{sW2E}")
            def f(n=n): tok_w2[n] = g.vm(f"buffer_load_dwordx4 v{vW2G+n%4}, {sr(S_W2,4)}, s{sW2O} offen lds")
            out.append(f)
            if n % 4 == 3 and n < 39:
                out += [f"s_add_u32 s{sW2O}, s{sW2O}, 65536", f"s_cmp_ge_u32 s{sW2O}, s{sW2E}", f"s_cselect_b32 s{sW2O}, s{sW2S}, s{sW2O}"]
        return out
    trd = {}
    def w2_read_items(n, dst, kind):
        u = slot_unit[n]; win, base = divmod(u, 12); out = []
        for tl in range(2):
            for hh in range(2):
                def f(tl=tl, hh=hh): trd[(n, tl)] = g.ds(f"ds_read_b64_tr_b16 {vr(dst+4*tl+2*hh,2,kind)}, v{vW2R+2*win+tl} offset:{base*4096+hh*1024}")
                out.append(f)
        return out
    def held_items(n): return w2_read_items(n, aW2 + 8 * n, "a")

    def glue(items):
        out = []; i = 0
        while i < len(items):
            x = items[i]
            if isinstance(x, str) and x.startswith("s_cmp"):
                y = items[i + 1]; out.append(lambda x=x, y=y: I(x, y)); i += 2
            elif isinstance(x, str) and x == "s_mov_b64 exec, 1":
                y, z = items[i + 1], items[i + 2]; out.append(lambda x=x, y=y, z=z: (I(x), y(), I(z))); i += 3
            else:
                out.append(x); i += 1
        return out

    tok = {}
    vK, vV, vO, vKS, vVF, vPK = vX+6, vX+16, vX+24, 64, 80, vX+34
    def kv_block():
        pass

    tw = {}
    def w1_read_items(n):
        i, j = divmod(n, 4); b = vWF + 12 * (n % 3); out = []
        for u in range(3):
            for hh in range(2):
                def f(u=u, hh=hh): tw[(n, u)] = g.ds(f"ds_read_b64_tr_b16 {vr(b+4*u+2*hh,2)}, v{vW1R+j} offset:{(i%4)*12288+u*1024+hh*256}")
                out.append(f)
        return out
    tq = {}
    def q_read_items(i):
        out = []
        for k in range(4):
            def f(k=k): tq[(i, k)] = g.ds(f"ds_read_b128 {vr(vQF+16*(i%2)+4*k,4)}, v{vQR+k} offset:{(i%3)*16384}")
            out.append(f)
        return out
    rq, dq, fq = Q(), Q(), Q()
    def step(n, rmax=2):
        i, j = divmod(n, 4); b = vWF + 12 * (n % 3); q = vQF + 16 * (i % 2) + 4 * j
        for u in range(3):
            g.wait(ds=max(tw[(n, u)], tq[(i, j)]))
            c = "0" if n == 0 else vr(vACC+16*u, 16)
            I(f"v_mfma_f32_32x32x16_bf16 {vr(vACC+16*u,16)}, {vr(b+4*u,4)}, {vr(q,4)}, {c}")
            gap(5, (rq, rmax), (dq, 3), (fq, 5))
        c = "0" if n == 0 else vr(vSUM, 4)
        if not (i == 7 and j > 0):
            for jj in (range(4) if i == 7 else [j]):
                qq = vQF + 16 * (i % 2) + 4 * jj
                I(f"v_mfma_f32_16x16x32_bf16 {vr(vSUM,4)}, {vr(vMASK,4)}, {vr(qq,4)}, {c}")
                gap(2, (rq, 1), (dq, 2), (fq, 2))
        if j == 0:
            for u in range(3):
                c = "0" if n == 0 else vr(vCS+4*u, 4)
                I(f"v_mfma_f32_16x16x32_bf16 {vr(vCS+4*u,4)}, {vr(vMASK,4)}, {vr(b+4*u,4)}, {c}")
                gap(2, (rq, 1), (dq, 2), (fq, 2))
    def dot_batch(i):
        for k in range(16):
            q = vQF + 16 * (i % 2) + k
            I(f"v_dot2_f32_bf16 v{vSQ+k%4}, v{q}, v{q}, v{vSQ+k%4}")
    vSS = vX + 32
    vPK = vX + 24
    for i in range(9):
        if i <= 7: g.wait(vm=tok_chunk[i], ds=g.nds-1)
        else: g.wait(ds=g.nds-1)
        I("s_barrier")
        stamp(f"it{i}")
        pre, post = [], []
        if i == 0:
            a, b = chunk_items(2); pre += a + b
        if i + 3 <= 7:
            a, b = chunk_items(i + 3)
            if 1 <= i <= 4: pre += w2_items(2)
            pre += a; post += b
        elif i <= 7:
            pre += w2_items(3); post += w2_items(4)
        else:
            pre += w2_items(3)
        if i == 1:
            def kvrd0(): g.ds(f"ds_read_b128 {vr(vPK,4)}, v{pKSR}")
            def kvrd1(): tok["kvr"] = g.ds(f"ds_read_b128 {vr(vPK+4,4)}, v{pKSR} offset:{8*144}")
            rq.add(kvrd0, kvrd1)
            def kvst0(): g.vm(f"buffer_store_dwordx4 {vr(vPK,4)}, v{pKG0}, {sr(S_WS,4)}, s{sKVS} offen sc1")
            def kvst1(): tok["kvst"] = g.vm(f"buffer_store_dwordx4 {vr(vPK+4,4)}, v{pKG1}, {sr(S_WS,4)}, s{sKVS} offen sc1")
            post = [kvst0, kvst1] + post
        if i == 4:
            assert g.vm_done >= tok["kvst"]
            pre = flag_items(sFA) + pre
        if i == 5:
            def s0(): g.vm(f"buffer_load_dwordx2 {vr(vSS,2)}, v{t1}, {sr(S_SSM,4)}, 0 offen")
            def s1(): g.vm(f"buffer_load_dwordx4 {vr(vSS+2,4)}, v{pSSM}, {sr(S_SSM,4)}, 0 offen")
            def s2(): g.vm(f"buffer_load_dwordx2 {vr(vSS+6,2)}, v{pSSM}, {sr(S_SSM,4)}, 0 offen offset:1016")
            def s3(): g.vm(f"buffer_load_dwordx4 {vr(vSS+8,4)}, v{pSSM}, {sr(S_SSM,4)}, 0 offen offset:1024")
            def s4(): tok["ssm"] = g.vm(f"global_load_dword v{pD}, v{pD}, {sr(sPD,2)}")
            pre = [f"v_add_u32 v{t1}, -8, v{pSSM}", s0, s1, s2, s3, s4] + pre
        if i == 7:
            def pa(): tok["pollA"] = poll_issue(sPA, vF1)
            pre = [pa] + pre
        if i <= 7:
            rq.add(*q_read_items(i)); rq.add(*w1_read_items(4 * i))
        else:
            tcs = {}
            for u in range(3):
                def f(u=u): tcs[u] = g.ds(f"ds_read_b128 {vr(vCS+4*u,4)}, v{pCSR} offset:{u*512}")
                rq.add(f)
        if 4 <= i <= 7:
            assert g.vm_done >= tok_w2[2 * (i - 4) + 1]
            fq.add(*held_items(2 * (i - 4))); fq.add(*held_items(2 * (i - 4) + 1))
        dq.add(*glue(pre))
        if i > 0:
            step(4 * i - 2, rmax=3); rq.flush()
            if i <= 7: rq.add(*w1_read_items(4 * i + 1))
            step(4 * i - 1); rq.flush()
        else:
            rq.flush(); rq.add(*w1_read_items(1)); rq.flush(); dq.pop(8)
        if i == 8: break
        rq.add(*w1_read_items(4 * i + 2))
        g.wait(ds=tq[(i, 3)])
        dq.add(*glue(post))
        step(4 * i); rq.flush()
        rq.add(*w1_read_items(4 * i + 3))
        if i == 7:
            fq.add(f"v_and_b32 v{t0}, 16, v{vL}", f"v_cmp_ne_u32 vcc, 0, v{t0}")
            for u in range(3):
                fq.add(f"v_cndmask_b32 v{t3}, v{vCS+4*u}, v{vCS+4*u+1}, vcc", f"v_cvt_pk_bf16_f32 v{t4}, v{t3}, v{t3}", f"v_lshlrev_b32 v{t4}, 16, v{t4}",
                       f"v_sub_f32 v{t3}, v{t3}, v{t4}", f"v_cvt_pk_bf16_f32 v{vCS+4*u+2}, v{t4}, v{t3}",
                       lambda u=u: g.ds(f"ds_write_b32 v{pCSW}, v{vCS+4*u+2} offset:{u*512}"))
        step(4 * i + 1); rq.flush(); dq.flush(); fq.flush()
        dot_batch(i)
        if i == 0:
            vK, vV, vO = vX+6, vX+16, vX+24
            vKS = vQF + 16
            vWA, vWB = t0, t1
            g.wait(vm=tok_kv)
            stamp("kv_landed")
            tk = [g.ds(f"ds_read_b64_tr_b16 {vr(vK+2*j,2)}, v{pKTR} offset:{512+512*j}") for j in range(5)]
            tv = [g.ds(f"ds_read_b64_tr_b16 {vr(vV+2*j,2)}, v{pKTR} offset:{3072+512*j}") for j in range(4)]
            I(f"v_alignbit_b32 v{vWA}, v{vX+4}, v{vX+4}, 16", f"v_alignbit_b32 v{vWB}, v{vX+5}, v{vX+5}, 16")
            g.wait(ds=tk[4])
            for j in range(9): I(f"v_alignbit_b32 v{vO+j}, v{vK+j+1}, v{vK+j}, 16")
            for a in range(8):
                I(f"v_dot2_f32_bf16 v{vKS+2*a}, v{vO+a}, v{vWB}, 0", f"v_dot2_f32_bf16 v{vKS+2*a+1}, v{vK+a+1}, v{vWB}, 0")
            for a in range(8):
                I(f"v_dot2_f32_bf16 v{vKS+2*a}, v{vO+a+1}, v{vWA}, v{vKS+2*a}", f"v_dot2_f32_bf16 v{vKS+2*a+1}, v{vK+a+2}, v{vWA}, v{vKS+2*a+1}")
            g.wait(ds=tv[3])
            vVF = vX + 24
            for a in range(8):
                I(f"v_lshlrev_b32 v{vVF+2*a}, 16, v{vV+a}", f"v_and_b32 v{vVF+2*a+1}, 0xffff0000, v{vV+a}")
            for a in range(8):
                I(f"v_pk_mul_f32 {vr(vKS+2*a,2)}, {vr(vKS+2*a,2)}, {vr(vVF+2*a,2)}")
            for j in range(8):
                I(f"v_cvt_pk_bf16_f32 v{vX+8+j}, v{vKS+15-2*j}, v{vKS+14-2*j}")
            g.ds(f"ds_write_b128 v{pKSW}, {vr(vX+8,4)}"); g.ds(f"ds_write_b128 v{pKSW}, {vr(vX+12,4)} offset:16")
            stamp("kv_done")
        if i == 7:
            I(f"v_cndmask_b32 v{t0}, v{vSUM}, v{vSUM+1}, vcc",
              f"v_add_f32 v{vSQ}, v{vSQ}, v{vSQ+1}", f"v_add_f32 v{vSQ+2}, v{vSQ+2}, v{vSQ+3}", f"v_mul_f32 v{t0}, 0x3b000000, v{t0}", f"v_add_f32 v{vSQ}, v{vSQ}, v{vSQ+2}", f"v_mov_b32 v{vSQ+1}, v{vSQ}")
            fq.add(f"v_permlane32_swap_b32 v{vSQ}, v{vSQ+1}", f"v_add_f32 v{vSQ}, v{vSQ}, v{vSQ+1}", f"v_mul_f32 v{vSQ}, 0x3b000000, v{vSQ}",
              f"v_fma_f32 v{vSQ}, -v{t0}, v{t0}, v{vSQ}", f"v_max_f32 v{vSQ}, 0, v{vSQ}",
              f"v_cvt_pk_bf16_f32 v{t3}, v{t0}, v{vSQ}",
              f"v_lshlrev_b32 v{t0}, 16, v{t3}", f"v_and_b32 v{t4}, 0xffff0000, v{t3}",
              f"v_cvt_pk_bf16_f32 v{t3}, -v{t0}, -v{t0}", f"v_cmp_gt_u32 vcc, 32, v{vL}",
              f"v_add_f32 v{t4}, 0x3727c5ac, v{t4}", f"v_cvt_pk_bf16_f32 v{t4}, v{t4}, v{t4}",
              f"v_cndmask_b32 v{vSUM}, 0, v{t3}, vcc", f"v_mov_b32 v{vSUM+1}, v{vSUM}", f"v_mov_b32 v{vSUM+2}, v{vSUM}", f"v_mov_b32 v{vSUM+3}, v{vSUM}",
              f"v_lshlrev_b32 v{t4}, 16, v{t4}", f"v_sqrt_f32 v{t4}, v{t4}", f"v_cvt_pk_bf16_f32 v{t4}, v{t4}, v{t4}", f"v_lshlrev_b32 v{vSD}, 16, v{t4}", f"v_mov_b32 v{vSD+1}, v{vSD}",
              f"v_rcp_f32 v{t1}, v{vSD}", f"v_mul_f32 v{vC1}, 0xbfb8aa3b, v{t1}", f"v_mov_b32 v{vC1+1}, v{vC1}",
              lambda: g.ds(f"ds_write_b64 v{pSTW}, {vr(t0,2)}"))
    fq.pop(16)
    g.wait(ds=tcs[2])
    for u in range(3):
        I(f"v_mfma_f32_32x32x16_bf16 {vr(vACC+16*u,16)}, {vr(vCS+4*u,4)}, {vr(vSUM,4)}, {vr(vACC+16*u,16)}")
        gap(5, (fq, 5), (dq, 5))
    dq.flush(); fq.flush()
    poll_check(tok["pollA"], sPA, vF1)
    vKT = vQF
    g.vm(f"buffer_load_dwordx4 {vr(vKT,4)}, v{vL16}, {sr(S_WS,4)}, s{sKVL} offen sc1")
    tok["kvt"] = g.vm(f"buffer_load_dwordx4 {vr(vKT+4,4)}, v{vL16}, {sr(S_WS,4)}, s{sKVL} offen offset:1024 sc1")
    stamp("pollA")

    vE = vWF
    vHP = vX
    for u in range(3):
        a = vACC + 16 * u; p = vHP + 8 * u
        for k in range(8): I(f"v_pk_mul_f32 {vr(vE+2*k,2)}, {vr(a+2*k,2)}, {vr(vC1,2)}")
        for k in range(16): I(f"v_exp_f32 v{vE+k}, v{vE+k}")
        for k in range(8): I(f"v_pk_fma_f32 {vr(vE+2*k,2)}, {vr(vE+2*k,2)}, {vr(vSD,2)}, {vr(vSD,2)}")
        for k in range(16): I(f"v_rcp_f32 v{vE+k}, v{vE+k}")
        for k in range(8): I(f"v_pk_mul_f32 {vr(vE+2*k,2)}, {vr(vE+2*k,2)}, {vr(a+2*k,2)}")
        for kk in range(2):
            for k in range(4): I(f"v_cvt_pk_bf16_f32 v{p+4*kk+k}, v{vE+8*kk+2*k}, v{vE+8*kk+2*k+1}")
            if u < 2: tok["hst"] = g.vm(f"buffer_store_dwordx4 {vr(p+4*kk,4)}, v{vL16}, {sr(S_WS,4)}, s{sHST} offen offset:{(2*u+kk)*1024} sc1")
            else: tok["hst"] = g.vm(f"buffer_store_dwordx4 {vr(p+4*kk,4)}, v{vL16}, {sr(S_WSU,4)}, s{sHST2} offen offset:{kk*1024} sc1")
    stamp("silu")
    if o.stop <= 2:
        g.wait(vm=g.nvm-1); finish(); return g, stamp_regs

    g.wait(vm=tok["kvt"])
    vCP = vACC
    g.ds(f"ds_write_b128 v{pUW}, {vr(vKT,4)}")
    for k in range(2):
        d = vSS + 6 * k; c = vCP + 12 * k
        for j in range(4): I(f"v_alignbit_b32 v{c+j}, v{d+2+j}, v{d+1+j}, 16")
        g.ds(f"ds_write_b128 v{pCW}, {vr(d+2,4)} offset:{32+1024*k}")
        for j in range(4): I(f"v_mov_b32 v{c+4+j}, v{d+1+j}")
        g.ds(f"ds_write_b128 v{pCW}, {vr(c,4)} offset:{CSTR+32+1024*k}")
        for j in range(4): I(f"v_alignbit_b32 v{c+8+j}, v{d+1+j}, v{d+j}, 16")
        g.ds(f"ds_write_b128 v{pCW}, {vr(c+4,4)} offset:{2*CSTR+32+1024*k}")
        if k == 0:
            for j in range(4): I(f"v_mov_b32 v{vCP+24+j}, 0")
        else:
            I(f"s_and_b32 s{sT0}, s{sCH}, 1", f"s_lshl_b32 s{sT0}, s{sT0}, 4", f"v_lshrrev_b32 v{pD}, s{sT0}, v{pD}", f"v_lshlrev_b32 v{pD}, 16, v{pD}")
        g.ds(f"ds_write_b128 v{pCW}, {vr(c+8,4)} offset:{3*CSTR+32+1024*k}")
    g.ds(f"ds_write_b128 v{pUW}, {vr(vKT+4,4)} offset:1024")
    I("s_mov_b32 exec_hi, 63")
    g.ds(f"ds_write_b128 v{pZW}, {vr(vCP+24,4)}")
    I("s_mov_b32 exec_hi, -1")
    I(f"v_mov_b32 v{vQG}, v{pYG1}", f"v_xor_b32 v{vQG+1}, 64, v{pYG1}", f"v_add_u32 v{vQG+1}, 0x2000, v{vQG+1}", f"v_mov_b32 v{vQG+2}, v{pYG0}", f"v_add_u32 v{vQG+3}, 0x2000, v{pYG0}")
    g.wait(ds=g.nds-1); I("s_barrier")
    assert g.vm_done >= tok_w2[31]
    stamp("Bb")
    vY = vACC
    vFR = 96
    tcv = {}
    def conv_read_items(st):
        b = vFR + 64 * (st % 2); out = []
        def fa(a, hh): tcv[(st, "a", a)] = g.ds(f"ds_read_b64 {vr(b+4*a+2*hh,2)}, v{pA} offset:{64*st+512*a+8*hh}")
        def fb(a): tcv[(st, "b", a)] = g.ds(f"ds_read_b128 {vr(b+32+4*a,4)}, v{pB} offset:{512*(7-a)+64*st}")
        out += [lambda: fa(0, 0), lambda: fa(0, 1)]
        for a in range(8): out.append(lambda a=a: fb(a))
        for a in range(1, 8): out += [lambda a=a: fa(a, 0), lambda a=a: fa(a, 1)]
        return out
    rq.add(*conv_read_items(0)); rq.pop(12)
    tok_h = {}; h_next = [0]
    def h_items(cnt):
        out = []
        for _ in range(cnt):
            n = h_next[0]
            if n >= 43: break
            h_next[0] += 1
            if n == 40: out.append(f"s_mov_b32 s{sHO}, s{sHE}")
            def f(n=n): tok_h[n] = g.vm(f"buffer_load_dwordx4 {ar(aH+4*(n%NHR),4)}, v{vL16}, {sr(S_WS,4)}, s{sHO} offen offset:{(n%4)*1024} sc1")
            out.append(f)
            if n % 4 == 3 and n < 39:
                out += [f"s_add_u32 s{sHO}, s{sHO}, 4096", f"s_cmp_ge_u32 s{sHO}, s{sHE}", f"s_cselect_b32 s{sHO}, s{sHS}, s{sHO}"]
        return out
    for st in range(4):
        b = vFR + 64 * (st % 2)
        if st < 3: rq.add(*conv_read_items(st + 1))
        if st == 0:
            for n in range(8, 19): fq.add(*held_items(n))
        if st == 1:
            dq.add(*glue(w2_items(11)))
        pairs = sorted((a, s - a) for s in range(8) for a in range(s + 1))
        first = set()
        for idx, (a, bb) in enumerate(pairs):
            acc = vY + 4 * (a + bb)
            c = "0" if (st == 0 and (a + bb) not in first) else vr(acc, 4)
            first.add(a + bb)
            g.wait(ds=max(tcv[(st, "a", a)], tcv[(st, "b", bb)]))
            I(f"v_mfma_f32_16x16x32_bf16 {vr(acc,4)}, {vr(b+4*a,4)}, {vr(b+32+4*bb,4)}, {c}")
            gap(2, (rq, 1), (dq, 1), (fq, 2))
            if (st, idx) == o.flagb_at:
                g.wait(vm=tok["hst"]); flag_store(sFB); stamp("flagB")
            if (st, idx) == o.pollb_at:
                tp = poll_issue(sPB, vF2)
        rq.flush(); dq.flush(); fq.flush()
        if st == 0:
            g.wait(ds=g.nds-1); I("s_barrier")
    stamp("conv")
    vU = vFR; vUF = vFR + 8; vYK = vFR + 24
    tu = [g.ds(f"ds_read_b64 {vr(vU+2*k,2)}, v{pUR} offset:{1536-512*k}") for k in range(4)]
    poll_check(tp, sPB, vF2)
    stamp("pollB")
    emit(h_items(NHR - 1))
    lo, lj = g.label("LO"), g.label("LJ")
    g.wait(ds=tu[3])
    for k in range(4):
        I(f"v_and_b32 v{vUF+4*k}, 0xffff0000, v{vU+2*k+1}", f"v_lshlrev_b32 v{vUF+4*k+1}, 16, v{vU+2*k+1}",
          f"v_and_b32 v{vUF+4*k+2}, 0xffff0000, v{vU+2*k}", f"v_lshlrev_b32 v{vUF+4*k+3}, 16, v{vU+2*k}")
    I(f"s_cmp_lg_u32 s{sW0b}, 0", f"s_cbranch_scc1 {lo}")
    sv = (g.nds, g.ds_done)
    for par in range(2):
        g.nds, g.ds_done = sv
        keep, send = (vY, vY + 16) if par == 0 else (vY + 16, vY)
        for k in range(4):
            g.ds(f"ds_write_b128 v{pEXW}, {vr(send+4*k,4)} offset:{k*1024}")
            for j in range(4): I(f"v_fma_f32 v{vYK+4*k+j}, v{vUF+4*k+j}, v{pD}, v{keep+4*k+j}")
        if par == 0: I(f"s_branch {lj}", f"{lo}:")
    I(f"{lj}:")
    le = g.label("LE")
    I("s_cmp_lg_u32 s2, 0", f"s_cbranch_scc1 {le}")
    I(f"v_lshrrev_b32 v{t0}, 5, v{vL}", f"v_lshlrev_b32 v{t0}, 14, v{t0}", f"v_and_b32 v{t1}, 31, v{vL}", f"v_lshl_add_u32 v{t0}, v{t1}, 7, v{t0}",
      f"s_lshl_b32 s{sT0}, s{sW}, 15", f"s_add_u32 s{sT1}, s{sT0}, {FA_OFF}", f"v_not_b32 v{vFL}, v{vNON}")
    svm = g.vm_done; poll_check(g.vm_done, sT1, t0); g.vm_done = svm
    I(f"{le}:")
    assert g.vm_done >= tok_w2[42]
    g.wait(ds=g.nds-1); I("s_barrier")
    le2 = g.label("LE")
    I(f"s_or_b32 s{sT0}, s2, s{sW}", f"s_cbranch_scc1 {le2}", f"s_mov_b32 s{sT1}, {E_OFF}", "s_mov_b64 exec, 1",
      f"buffer_store_dword v{vNON}, off, {sr(S_WS,4)}, s{sT1} sc1", "s_mov_b64 exec, -1", f"{le2}:")
    vYX = vFR + 40
    tx = [g.ds(f"ds_read_b128 {vr(vYX+4*k,4)}, v{pEXR} offset:{k*1024}") for k in range(4)]
    g.wait(ds=tx[3])
    for i in range(2):
        I(f"s_add_u32 m0, s{sZP}, {i*1024}")
        for k in range(4): I(f"v_pk_add_f32 {vr(vYK+8*i+2*k,2)}, {vr(vYK+8*i+2*k,2)}, {vr(vYX+8*i+2*k,2)}")
        tok["x"] = g.vm(f"buffer_load_dwordx4 v{vQG+i}, {sr(S_Q,4)}, s{sTILE} offen lds")
    vYP = vFR + 56
    for k in range(8): I(f"v_cvt_pk_bf16_f32 v{vYP+k}, v{vYK+2*k}, v{vYK+2*k+1}")
    for pr in range(2):
        I(f"v_permlane16_swap_b32 v{vYP+4*pr}, v{vYP+4*pr+2}", f"v_permlane16_swap_b32 v{vYP+4*pr+1}, v{vYP+4*pr+3}")
    for pr in range(2):
        tok["yst"] = g.vm(f"buffer_store_dwordx4 {vr(vYP+4*pr,4)}, v{pYS}, {sr(S_WS,4)}, s{sYS} offen offset:{pr*1024} sc1")
    stamp("yst")
    vO2 = vACC
    vW2F = 96
    vYL = 168
    vXR, vYR, vST, vXF, vYF = 176, 184, 192, 120, 136
    flagc_done = False
    for n in range(43):
        if NHELD <= n + 2 < 43: rq.add(*w2_read_items(n + 2, vW2F + 8 * ((n + 2) % 3), "v"))
        dq.add(*glue(h_items(1)))
        for tl in range(2):
            g.wait(vm=tok_h[n], ds=trd.get((n, tl)) if n >= NHELD else None)
            a = ar(aW2 + 8 * n + 4 * tl, 4) if n < NHELD else vr(vW2F + 8 * (n % 3) + 4 * tl, 4)
            c = "0" if n == 0 else vr(vO2 + 16 * tl, 16)
            I(f"v_mfma_f32_32x32x16_bf16 {vr(vO2+16*tl,16)}, {a}, {ar(aH+4*(n%NHR),4)}, {c}")
            gap(5, (rq, 2), (dq, 3), (fq, 5))
        rq.flush(); dq.flush()
        if not flagc_done and (g.vm_done >= tok["yst"] or n == o.flagc_at):
            g.wait(vm=tok["yst"]); flag_store(sFC); flagc_done = True; stamp("flagC")
        if n == o.pollc_at:
            tpc = poll_issue(sPC, vF2)
        if n == o.ychk_at:
            poll_check(tpc, sPC, vF2)
            g.vm(f"buffer_load_dwordx4 {vr(vYL,4)}, v{pKG0}, {sr(S_WS,4)}, s{sYL} offen sc1")
            ty = g.vm(f"buffer_load_dwordx4 {vr(vYL+4,4)}, v{pKG1}, {sr(S_WS,4)}, s{sYL} offen sc1")
            stamp("pollC")
    stamp("gemm2")
    g.wait(vm=ty)
    g.ds(f"ds_write_b128 v{pEXR}, {vr(vYL,4)} offset:2048"); tyw = g.ds(f"ds_write_b128 v{pEXR}, {vr(vYL+4,4)} offset:3072")
    I(f"s_lshl_b32 s{sT0}, s{sW1b}, 7", f"v_add_u32 v{t0}, s{sT0}, v{pPW}", f"s_xor_b32 s{sT0}, s{sT0}, 128", f"v_add_u32 v{t1}, s{sT0}, v{pPW}")
    g.ds(f"ds_read_b64 {vr(vST,2)}, v{pSTR}")
    g.wait(ds=tyw); I("s_barrier")
    for q in range(4): txr = g.ds(f"ds_read_b64 {vr(vXR+2*q,2)}, v{pXA+q}")
    for q in range(4): tq_ = g.ds(f"ds_read_b64_tr_b16 {vr(vYR+2*q,2)}, v{pYR} offset:{(4096 if q<2 else 0)+(q&1)*1024}")
    for q in range(4): g.ds(f"ds_write_b128 v{t1}, {vr(vO2+16+4*q,4)} offset:{32*q}")
    g.wait(ds=txr)
    I(f"v_mov_b32 v{vST+2}, v{vST+1}", f"v_mov_b32 v{vST+3}, v{vST+1}", f"v_mov_b32 v{vST+1}, v{vST}")
    for k in range(8): I(f"v_lshlrev_b32 v{vXF+2*k}, 16, v{vXR+k}", f"v_and_b32 v{vXF+2*k+1}, 0xffff0000, v{vXR+k}")
    for k in range(8): I(f"v_pk_add_f32 {vr(vO2+2*k,2)}, {vr(vO2+2*k,2)}, {vr(vXF+2*k,2)}")
    for k in range(8): I(f"v_pk_add_f32 {vr(vXF+2*k,2)}, {vr(vXF+2*k,2)}, {vr(vST,2)} neg_lo:[0,1] neg_hi:[0,1]")
    for k in range(8): I(f"v_pk_mul_f32 {vr(vXF+2*k,2)}, {vr(vXF+2*k,2)}, {vr(vST+2,2)}")
    g.wait(ds=tq_)
    for k in range(8): I(f"v_lshlrev_b32 v{vYF+2*k}, 16, v{vYR+k}", f"v_and_b32 v{vYF+2*k+1}, 0xffff0000, v{vYR+k}")
    for q in range(4):
        for k in (2*q, 2*q+1): I(f"v_pk_fma_f32 {vr(vO2+2*k,2)}, {vr(vXF+2*k,2)}, {vr(vYF+2*k,2)}, {vr(vO2+2*k,2)}")
        g.ds(f"ds_write_b128 v{t0}, {vr(vO2+4*q,4)} offset:{32*q}")
    g.wait(ds=g.nds-1); I("s_barrier")
    vF0 = 96
    tf = {}
    for i in range(2):
        for p in range(2):
            for h in range(2):
                tf[i] = g.ds(f"ds_read_b128 {vr(vF0+16*i+8*p+4*h,4)}, v{pFR} offset:{i*8*PSTR+p*64*PSTR+16*h}")
    for i in range(2):
        g.wait(ds=tf[i])
        for k in range(4): I(f"v_pk_add_f32 {vr(vF0+16*i+2*k,2)}, {vr(vF0+16*i+2*k,2)}, {vr(vF0+16*i+8+2*k,2)}")
        for k in range(4): I(f"v_cvt_pk_bf16_f32 v{vF0+32+4*i+k}, v{vF0+16*i+2*k}, v{vF0+16*i+2*k+1}")
        g.vm(f"buffer_store_dwordx4 {vr(vF0+32+4*i,4)}, v{vQG+2+i}, {sr(S_OUT,4)}, s{sTILE} offen")
    finish()
    return g, stamp_regs

HEADER = open("cdna_kernels/" + NAME + ".s.ref").read().split("; Override launch")[0]

def render(o):
    g, names = gen(o)
    body = pad_hazards(g.L)
    out = [HEADER.rstrip("\n"), f"; @launch grid=(256,1,1) block=(256,1,1) lds={LDS_BYTES}",
           '.amdgcn_target "amdgcn-amd-amdhsa--gfx950"', ".text", f".globl {NAME}_kernel", ".p2align 8", f".type {NAME}_kernel,@function", f"{NAME}_kernel:"]
    out += [("" if l.endswith(":") else "    ") + l for l in body]
    out.append(f""".section .rodata,"a"
.p2align 6
.amdhsa_kernel {NAME}_kernel
  .amdhsa_next_free_vgpr 512
  .amdhsa_next_free_sgpr 102
  .amdhsa_accum_offset 256
  .amdhsa_group_segment_fixed_size 0
  .amdhsa_kernarg_size 96
  .amdhsa_user_sgpr_count 2
  .amdhsa_user_sgpr_kernarg_segment_ptr 1
  .amdhsa_system_sgpr_workgroup_id_x 1
.end_amdhsa_kernel""")
    return "\n".join(out) + "\n", names

if __name__ == "__main__":
    import argparse
    ap = argparse.ArgumentParser()
    ap.add_argument("-o", default="cdna_kernels/" + NAME + ".s")
    ap.add_argument("--stop", type=int, default=99)
    ap.add_argument("--stamps", action="store_true")
    ap.add_argument("--npre", type=int, default=60)
    ap.add_argument("--flagb", default="1,0")
    ap.add_argument("--pollb", default="3,10")
    ap.add_argument("--flagc", type=int, default=99)
    ap.add_argument("--pollc", type=int, default=28)
    ap.add_argument("--ychk", type=int, default=42)
    a = ap.parse_args()
    a.flagb_at = tuple(int(x) for x in a.flagb.split(",")); a.pollb_at = tuple(int(x) for x in a.pollb.split(","))
    a.flagc_at, a.pollc_at, a.ychk_at = a.flagc, a.pollc, a.ychk
    s, names = render(a)
    open(a.o, "w").write(s)
    if a.stamps: open(a.o + ".names", "w").write("\n".join(names))
```

```python
import sys
from asmlib import *

NAME = "parallel_sum__ssm_conv_h3__dense_activation_silu__prompt"

H_OFF, KVT_OFF, YT_OFF = 0, 0x600000, 0x800000
FA_OFF, FB_OFF, FC_OFF, E_OFF, DBG_OFF = 0xA00000, 0xA20000, 0xA40000, 0xA60000, 0xB00000
WS_BYTES = 0x1000000
L_W1, L_Q = 0, 49152
L_SSM, CSTR = 98304, 4160
L_U, USTR = 131584, 4608
L_STAT, L_CS = 140800, 141824
L_Z = 143360
L_PART, PSTR = L_SSM, 272
LDS_BYTES = 163840
S_Q, S_K, S_V, S_W1, S_W1U, S_W2, S_SSM, S_WS, S_WSU, S_OUT = 28, 32, 36, 40, 44, 48, 52, 56, 60, 64
sX, sC, sW, sR, sJ, sE, sNON, sUS, sKAP, sOQ, sOW, sWK = 68, 69, 70, 71, 72, 73, 74, 75, 76, 77, 78, 79
sT0, sT1, sT2, sT3 = 80, 81, 82, 83
sW2O, sW2S, sW2E, sHO, sHS, sHE = 84, 85, 86, 87, 88, 89
sSPIN, sW3K, sHST, sHST2 = 90, 91, 92, 93
sCH, sS32 = 8, 9
sPSH, sPD = 10, 14
sKVS, sFA, sPA, sPB, sPC, sFB, sFC, sYS, sKVL, sYL, sZP, sTILE, sKVM, sW1b, sW0b = 12, 13, 16, 17, 18, 19, 20, 21, 22, 23, 24, 25, 26, 27, 3

class Opt:
    stop = 99; stamps = False

def gen(o):
    g = Gen(); I = g.I
    stamp_regs = []
    cold_code = []
    def stamp(name):
        if not o.stamps: return
        idx = len(stamp_regs); stamp_regs.append(name)
        I("s_memtime s[94:95]", "s_waitcnt lgkmcnt(0)", f"v_writelane_b32 v255, s94, {idx}")
        g.ds_done = g.nds - 1
    def finish():
        if o.stamps:
            stamp("end")
            I("s_memrealtime s[94:95]", "s_waitcnt lgkmcnt(0)", "v_writelane_b32 v255, s94, 62", f"v_writelane_b32 v255, s96, 63")
            I(f"s_lshl_b32 s{sT0}, s2, 2", f"s_add_u32 s{sT0}, s{sT0}, s{sW}", f"s_lshl_b32 s{sT0}, s{sT0}, 8", f"s_add_u32 s{sT0}, s{sT0}, {DBG_OFF}")
            I("v_lshlrev_b32 v254, 2, v1")
            g.vm(f"buffer_store_dword v255, v254, {sr(S_WS,4)}, s{sT0} offen")
        I("LEND:", "s_endpgm")
        for x in cold_code: I(x)

    class Q:
        def __init__(s): s.q = []
        def add(s, *x): s.q.extend(x)
        def pop(s, n=1):
            k = 0
            while s.q and k < n:
                x = s.q.pop(0); k += 1
                if callable(x): x()
                else: I(x)
            return k
        def flush(s): s.pop(10**9)
        def __len__(s): return len(s.q)
    def gap(budget, *qs):
        for q, mx in qs:
            budget -= q.pop(min(budget, mx))
            if budget <= 0: break

    vL = 1
    vQG = 2
    vW1G = 6
    vL16 = 7
    vQR = 8
    vW1R = 12
    vW2G = 16
    vW2R = 20
    vWT = 24
    vT = 26
    vMASK = 32
    vSUM = 36
    vCS = 40
    vSQ = 52
    vNON, vFL = 56, 57
    vF1, vF2 = 58, 59
    vC1 = 60
    vSD = 62
    vACC = 64
    vQF = 112
    aWF = 216
    vS = 144
    vX = 180
    vP = 224
    (pKTR, pKSW, pKSR, pKG0, pKG1, pCSW, pCSR, pSTW, pSSM, pCW, pUW, pZW, pA, pB, pEXW, pEXR, pUR, pYS, pD,
     pYG0, pYG1, pYW0, pYW1, pYR0, pYR1, pSTR, pPW, pPW1, pFR) = range(vP, vP + 29)
    t0, t1, t2, t3, t4, t5 = range(vT, vT + 6)

    I(f"s_cmp_ge_u32 s2, 256", "s_cbranch_scc1 LEND")
    if o.stamps:
        I("s_memrealtime s[96:97]"); stamp("entry")
    for srd, off in ((S_Q, 0), (S_W1, 56), (S_W1U, 56), (S_K, 8), (S_V, 16), (sPSH, 24), (S_WS, 88), (S_WSU, 88), (S_SSM, 32), (sPD, 40), (S_W2, 64), (S_OUT, 72)):
        I(f"s_load_dwordx2 {sr(srd,2)}, s[0:1], {off}")
    I("s_getpc_b64 s[4:5]", "LPC:")
    I(f"v_and_b32 v{vL}, 63, v0", f"v_lshrrev_b32 v{t0}, 6, v0")
    I(f"s_and_b32 s{sX}, s2, 7", f"s_lshr_b32 s{sC}, s2, 3")
    I(f"v_readfirstlane_b32 s{sW}, v{t0}")
    I(f"s_lshl_b32 s{sT0}, s{sC}, 2", f"s_add_u32 s{sT0}, s{sT0}, s{sW}", f"s_lshl_b32 s{sT0}, s{sT0}, 8")
    I(f"v_lshlrev_b32 v{t0}, 7, v{vL}", f"v_add_u32 v{t0}, s{sT0}, v{t0}", f"v_min_u32 v{t0}, LEND-LPC, v{t0}")
    I("s_mov_b64 exec, 3")
    g.vm(f"global_load_dword v{vFL}, v{t0}, s[4:5]")
    I("s_mov_b64 exec, -1")
    I(f"s_mov_b32 s{S_K+3}, 0x20000", f"s_mov_b32 s{S_K+2}, 0x200000")
    for srd in (S_V, S_Q): I(f"s_mov_b32 s{srd+3}, s{S_K+3}", f"s_mov_b32 s{srd+2}, s{S_K+2}")
    I(f"s_mov_b32 s{S_W1+3}, s{S_K+3}", f"s_mov_b32 s{S_W1+2}, {512*1376*2}", f"s_mov_b32 s{S_W1U+3}, s{S_K+3}")
    I(f"s_and_b32 s{sE}, s{sX}, 1", f"s_and_b32 s{sJ}, s{sC}, 7", f"s_lshr_b32 s{sT0}, s{sC}, 3",
      f"s_lshr_b32 s{sR}, s{sX}, 1", f"s_lshl_b32 s{sR}, s{sR}, 2", f"s_add_u32 s{sR}, s{sR}, s{sT0}")
    I(f"s_lshl_b32 s{sKAP}, s{sT0}, 1", f"s_add_u32 s{sKAP}, s{sKAP}, s{sJ}", f"s_and_b32 s{sKAP}, s{sKAP}, 7")
    I(f"s_mul_i32 s{sUS}, s{sE}, 22", f"s_mul_i32 s{sT1}, s{sJ}, 3", f"s_add_u32 s{sUS}, s{sUS}, s{sT1}",
      f"s_add_u32 s{sT1}, s{sJ}, s{sE}", f"s_max_u32 s{sT2}, s{sT1}, 6", f"s_sub_u32 s{sT2}, s{sT2}, 6", f"s_sub_u32 s{sUS}, s{sUS}, s{sT2}",
      f"s_cmp_lt_u32 s{sT1}, 6", f"s_cselect_b32 s{S_W1U+2}, s{S_W1+2}, 0", f"s_cselect_b32 s{S_WSU+2}, {WS_BYTES}, 0")
    I(f"s_lshl_b32 s{sWK}, s{sW}, 10", f"s_mul_i32 s{sW3K}, s{sW}, 3072", f"s_and_b32 s{sW0b}, s{sW}, 1", f"s_lshr_b32 s{sW1b}, s{sW}, 1")
    I(f"v_lshrrev_b32 v{t1}, 3, v{vL}", f"v_lshlrev_b32 v{t1}, 10, v{t1}", f"v_and_b32 v{t2}, 7, v{vL}", f"v_lshl_add_u32 v{t3}, v{t2}, 4, v{t1}",
      f"v_lshrrev_b32 v{t4}, 4, v{vL}", f"v_xor_b32 v{t4}, v{t2}, v{t4}", f"v_lshl_add_u32 v{t4}, v{t4}, 4, v{t1}")
    I(f"s_lshl_b32 s{sT0}, s{sR}, 17", f"s_lshl_b32 s{sT1}, s{sW}, 15", f"s_add_u32 s{sT0}, s{sT0}, s{sT1}")
    I(f"v_add_u32 v{vQG}, s{sT0}, v{t4}", f"v_xor_b32 v{vQG+1}, 64, v{vQG}", f"v_add_u32 v{vQG+1}, 0x2000, v{vQG+1}",
      f"v_add_u32 v{vQG+2}, 0x4000, v{vQG}", f"v_add_u32 v{vQG+3}, 0x4000, v{vQG+1}")
    I(f"s_lshl_b32 s{sT0}, s{sW}, 4", f"v_lshrrev_b32 v{t5}, 2, v{vL}", f"v_add_u32 v{t5}, s{sT0}, v{t5}",
      f"v_mul_u32_u24 v{t5}, 2752, v{t5}", f"v_and_b32 v{t0}, 3, v{vL}", f"v_lshl_add_u32 v{t5}, v{t0}, 4, v{t5}",
      f"s_lshl_b32 s{sT0}, s{sUS}, 6", f"v_add_u32 v{vW1G}, s{sT0}, v{t5}")
    I(f"s_lshl_b32 s{sT0}, s{sC}, 16", f"s_lshl_b32 s{sT1}, s{sW}, 14", f"s_add_u32 s{sT0}, s{sT0}, s{sT1}",
      f"s_lshl_b32 s{sT1}, s{sX}, 7", f"s_add_u32 s{sT0}, s{sT0}, s{sT1}",
      f"v_add_u32 v{vX+1}, s{sT0}, v{t3}", f"v_add_u32 v{vX}, 0xffffe000, v{vX+1}", f"v_add_u32 v{vX+2}, 0x2000, v{vX+1}",
      f"s_lshl_b32 s{sT1}, s{sX}, 9", f"v_lshl_add_u32 v{vX+3}, v{vL}, 3, s{sT1}",
      f"s_mul_i32 s{sKVM}, s{sW}, 5120", f"s_add_u32 s{sKVM}, s{sKVM}, {L_Z}")
    I(f"v_mov_b32 v{pYG0}, v{t3}")

    tok_chunk = {}
    def chunk_items(i):
        w, q = [], []
        w += [f"s_lshl_b32 s{sOQ}, s{sKAP}, 7", f"s_mul_i32 s{sOW}, s{sKAP}, {64*2752}", f"s_add_u32 s{sKAP}, s{sKAP}, 1"]
        for u in range(3):
            w.append(f"s_add_u32 m0, s{sW3K}, {L_W1 + (i%4)*12288 + u*1024 - u*64}")
            if u == 0: w.append(f"s_and_b32 s{sKAP}, s{sKAP}, 7")
            w.append(lambda u=u: g.vm(f"buffer_load_dwordx4 v{vW1G}, {sr(S_W1U if u==2 else S_W1,4)}, s{sOW} offen offset:{u*64} lds"))
        for k in range(4):
            q.append(f"s_add_u32 m0, s{sWK}, {L_Q + (i%3)*16384 + k*4096}")
            def f(k=k):
                t = g.vm(f"buffer_load_dwordx4 v{vQG+k}, {sr(S_Q,4)}, s{sOQ} offen lds")
                if k == 3: tok_chunk[i] = t
            q.append(f)
        return w, q
    def emit(items):
        for x in items:
            if callable(x): x()
            else: I(x)

    S = []
    A = lambda *x: S.extend(x)
    A(f"s_mov_b32 s{S_WS+3}, s{S_K+3}", f"s_mov_b32 s{S_WS+2}, {WS_BYTES}", f"s_mov_b32 s{S_WSU+3}, s{S_K+3}",
      f"s_mov_b32 s{S_W2+3}, s{S_K+3}", f"s_mov_b32 s{S_W2+2}, s{S_W1+2}",
      f"s_mov_b32 s{S_OUT+3}, s{S_K+3}", f"s_mov_b32 s{S_OUT+2}, s{S_K+2}",
      f"s_mov_b32 s{S_SSM+3}, s{S_K+3}", f"s_mov_b32 s{S_SSM+2}, 4096")
    A(f"v_lshlrev_b32 v{vL16}, 4, v{vL}")
    A(f"v_and_b32 v{t0}, 16, v{vL}", f"v_lshlrev_b32 v{t0}, 1, v{t0}", f"v_and_b32 v{t1}, 3, v{vL}", f"v_lshl_add_u32 v{t5}, v{t1}, 3, v{t0}",
      f"v_lshrrev_b32 v{t0}, 5, v{vL}", f"v_bfe_u32 v{t1}, v{vL}, 2, 2")
    A(f"v_lshl_add_u32 v{t2}, v{t0}, 3, v{t1}", f"v_lshl_add_u32 v{t2}, v{t2}, 6, v{t5}")
    A(f"v_bfe_u32 v{t3}, v{vL}, 3, 2", f"v_lshlrev_b32 v{t3}, 12, v{t3}", f"v_and_b32 v{t4}, 7, v{vL}", f"v_lshl_add_u32 v{t3}, v{t4}, 7, v{t3}",
      f"s_add_u32 s{sT0}, s{sWK}, {L_Q}", f"v_add_u32 v{t3}, s{sT0}, v{t3}",
      f"v_bfe_u32 v{t4}, v{vL}, 1, 3", f"v_xor_b32 v{t4}, v{t4}, v{t0}", f"v_lshl_add_u32 v{t3}, v{t4}, 4, v{t3}")
    for i in range(4):
        A(f"s_add_u32 s{sT0}, s{sW}, {i}", f"s_and_b32 s{sT0}, s{sT0}, 3", f"s_mul_i32 s{sT1}, s{sT0}, 3072", f"s_lshl_b32 s{sT0}, s{sT0}, 5",
          f"v_add_u32 v{vW1R+i}, s{sT1}, v{t2}", f"v_xor_b32 v{vQR+i}, s{sT0}, v{t3}")
    A(f"v_lshrrev_b32 v{t2}, 4, v{vL}", f"v_xor_b32 v{t2}, v{t2}, v{vL}", f"v_and_b32 v{t2}, 1, v{t2}", f"v_cmp_eq_u32 vcc, 0, v{t2}",
      f"v_mov_b32 v{t3}, 0x3f803f80", f"v_mov_b32 v{vSQ}, 0", f"v_cndmask_b32 v{vMASK}, 0, v{t3}, vcc")
    for i in range(1, 4): A(f"v_mov_b32 v{vMASK+i}, v{vMASK}", f"v_mov_b32 v{vSQ+i}, 0")
    A(f"v_lshl_add_u32 v{t2}, v{t1}, 7, v{t5}", f"v_lshl_add_u32 v{t2}, v{t0}, 6, v{t2}", f"v_add_u32 v{pKTR}, s{sKVM}, v{t2}")
    A(f"v_lshl_add_u32 v{t2}, v{t0}, 2, v{t1}", f"v_lshl_add_u32 v{t2}, v{t2}, 7, v{t5}",
      f"v_and_b32 v{t3}, 8, v{vL}", f"v_lshl_add_u32 v{t2}, v{t3}, 3, v{t2}",
      f"s_mul_i32 s{sT0}, s{sW1b}, {2048+64}", f"v_xor_b32 v{vW2R}, s{sT0}, v{t2}", f"v_xor_b32 v{vW2R+1}, 64, v{vW2R}",
      f"v_add_u32 v{vW2R+2}, 49152, v{vW2R}", f"v_add_u32 v{vW2R+3}, 49152, v{vW2R+1}")
    A(f"s_lshl_b32 s{sT0}, s{sW0b}, 13", f"s_lshl_b32 s{sT1}, s{sJ}, 7", f"s_add_u32 s{sT0}, s{sT0}, s{sT1}",
      f"v_and_b32 v{t3}, 16, v{vL}", f"v_lshlrev_b32 v{t3}, 2, v{t3}", f"v_xor_b32 v{t2}, v{pYG0}, v{t3}", f"v_add_u32 v{vW2G}, s{sT0}, v{t2}")
    for k in range(1, 4): A(f"v_add_u32 v{vW2G+k}, {16384*k}, v{vW2G}")
    A(f"s_and_b32 s{sT1}, s{sR}, 3", f"s_mul_i32 s{sT1}, s{sT1}, 3", f"s_add_u32 s{sT0}, s{sJ}, s{sT1}",
      f"s_sub_u32 s{sT1}, s{sT0}, 10", f"s_min_u32 s{sT0}, s{sT0}, s{sT1}",
      f"s_mul_i32 s{sT1}, s{sW1b}, 43",
      f"s_lshl_b32 s{sW2S}, s{sT1}, 14", f"s_add_u32 s{sW2E}, s{sW2S}, {40*16384}",
      f"s_lshl_b32 s{sT2}, s{sT0}, 16", f"s_add_u32 s{sW2O}, s{sW2S}, s{sT2}",
      f"s_lshl_b32 s{sT2}, s{sR}, 2", f"s_lshl_b32 s{sT3}, s{sE}, 1", f"s_add_u32 s{sT3}, s{sT2}, s{sT3}", f"s_add_u32 s{sS32}, s{sT3}, s{sW0b}",
      f"s_mul_i32 s{sT3}, s{sS32}, 86", f"s_add_u32 s{sT3}, s{sT3}, s{sT1}", f"s_lshl_b32 s{sHS}, s{sT3}, 10",
      f"s_add_u32 s{sHE}, s{sHS}, {40*1024}", f"s_lshl_b32 s{sT3}, s{sT0}, 12", f"s_add_u32 s{sHO}, s{sHS}, s{sT3}",
      f"s_add_u32 s{sT2}, s{sT2}, s{sW}",
      f"s_mul_i32 s{sT3}, s{sT2}, 86", f"s_lshl_b32 s{sT0}, s{sUS}, 1", f"s_add_u32 s{sT3}, s{sT3}, s{sT0}", f"s_lshl_b32 s{sHST}, s{sT3}, 10", f"s_add_u32 s{sHST2}, s{sHST}, 4096",
      f"s_lshl_b32 s{sT2}, s{sT2}, 4", f"s_lshl_b32 s{sT3}, s{sE}, 3", f"s_add_u32 s{sT2}, s{sT2}, s{sT3}", f"s_add_u32 s{sT2}, s{sT2}, s{sJ}", f"s_lshl_b32 s{sT2}, s{sT2}, 7", f"s_add_u32 s{sFB}, s{sT2}, {FB_OFF}",
      f"s_lshl_b32 s{sT2}, s{sS32}, 11", f"s_add_u32 s{sPB}, s{sT2}, {FB_OFF}")
    A(f"s_lshl_b32 s{sT0}, s{sX}, 6", f"s_lshl_b32 s{sT1}, s{sC}, 1", f"s_add_u32 s{sT1}, s{sT1}, s{sW1b}", f"s_add_u32 s{sCH}, s{sT0}, s{sT1}",
      f"s_lshl_b32 s{sT2}, s{sX}, 1", f"s_add_u32 s{sT2}, s{sT2}, s{sW0b}", f"s_lshl_b32 s{sT2}, s{sT2}, 6", f"s_add_u32 s{sT2}, s{sT2}, s{sT1}", f"s_lshl_b32 s{sT2}, s{sT2}, 7", f"s_add_u32 s{sFC}, s{sT2}, {FC_OFF}",
      f"s_lshl_b32 s{sT0}, s{sCH}, 12", f"s_add_u32 s{S_SSM}, s{S_SSM}, s{sT0}", f"s_addc_u32 s{S_SSM+1}, s{S_SSM+1}, 0",
      f"s_lshl_b32 s{sT1}, s{sW0b}, 11", f"s_add_u32 s{sT0}, s{sT0}, s{sT1}", f"s_add_u32 s{sKVL}, s{sT0}, {KVT_OFF}", f"s_add_u32 s{sYS}, s{sT0}, {YT_OFF}",
      f"v_add_u32 v{pSSM}, s{sT1}, v{vL16}",
      f"s_mul_i32 s{sT2}, s{sW1b}, {4*CSTR}", f"s_add_u32 s{sT2}, s{sT2}, {L_SSM}",
      f"s_mul_i32 s{sT3}, s{sW1b}, {USTR}", f"s_add_u32 s{sT3}, s{sT3}, {L_U}",
      f"v_add_u32 v{pCW}, s{sT2}, v{pSSM}", f"v_add_u32 v{pUW}, s{sT3}, v{pSSM}",
      f"v_lshrrev_b32 v{t2}, 1, v{vL}", f"v_lshlrev_b32 v{vF1}, 7, v{t2}", f"v_mul_u32_u24 v{t2}, {CSTR}, v{t2}", f"v_and_b32 v{t3}, 1, v{vL}", f"v_lshl_add_u32 v{t2}, v{t3}, 4, v{t2}", f"v_add_u32 v{t2}, s{sT2}, v{t2}",
      f"s_add_u32 s{sT0}, s{sT3}, {4096-128}", f"v_add_u32 v{t3}, s{sT0}, v{vL16}", f"v_cmp_gt_u32 vcc, 8, v{vL}", f"v_lshrrev_b32 v{vF2}, 2, v{vL}", f"v_lshlrev_b32 v{vF2}, 7, v{vF2}", f"v_cndmask_b32 v{pZW}, v{t3}, v{t2}, vcc",
      f"s_lshl_b32 s{sT0}, s{sW0b}, 8", f"v_and_b32 v{t2}, 15, v{vL}", f"v_and_b32 v{t3}, 48, v{vL}",
      f"s_add_u32 s{sT1}, s{sT3}, s{sT0}", f"s_add_u32 s{sT1}, s{sT1}, 480", f"v_add_u32 v{t4}, s{sT1}, v{t3}", f"v_lshlrev_b32 v{pYS}, 5, v{t2}", f"v_sub_u32 v{pB}, v{t4}, v{pYS}",
      f"v_sub_u32 v{t4}, 3, v{t2}", f"v_and_b32 v{t4}, 3, v{t4}", f"v_mul_u32_u24 v{t4}, {CSTR}, v{t4}", f"v_lshrrev_b32 v{t2}, 2, v{t2}", f"v_lshl_add_u32 v{t4}, v{t2}, 3, v{t4}",
      f"s_add_u32 s{sT1}, s{sT2}, s{sT0}", f"s_add_u32 s{sT1}, s{sT1}, 8", f"v_add3_u32 v{pA}, v{t4}, v{t3}, s{sT1}",
      f"s_lshl_b32 s{sT0}, s{sW0b}, 11", f"s_sub_u32 s{sT0}, s{sT3}, s{sT0}", f"s_add_u32 s{sT0}, s{sT0}, {4088-1536}", f"v_lshrrev_b32 v{t3}, 1, v{t3}", f"v_add_u32 v{t3}, v{t3}, v{pYS}", f"v_sub_u32 v{pUR}, s{sT0}, v{t3}",
      f"v_and_b32 v{t3}, 16, v{vL}", f"v_lshl_add_u32 v{pYS}, v{t3}, 5, v{pYS}", f"v_lshl_add_u32 v{pYS}, v{t0}, 4, v{pYS}",
      f"s_lshl_b32 s{sT0}, s{sW}, 12", f"s_add_u32 s{sT0}, s{sT0}, {L_Z}", f"v_add_u32 v{pEXW}, s{sT0}, v{vL16}",
      f"s_xor_b32 s{sT0}, s{sW}, 1", f"s_lshl_b32 s{sT0}, s{sT0}, 12", f"s_add_u32 s{sZP}, s{sT0}, {L_Z}", f"v_add_u32 v{pEXR}, s{sZP}, v{vL16}")
    A(f"s_lshl_b32 s{sT0}, s{sW}, 5", f"s_sub_u32 s{sT0}, {L_U+96}, s{sT0}", f"v_mul_u32_u24 v{t2}, 144, v{vL}", f"v_add_u32 v{pKSW}, s{sT0}, v{t2}",
      f"s_lshl_b32 s{sT0}, s{sW}, 4", f"v_lshrrev_b32 v{t2}, 3, v{vL}", f"v_add_u32 v{t3}, s{sT0}, v{t2}", f"v_and_b32 v{t4}, 7, v{vL}", f"v_lshlrev_b32 v{t4}, 4, v{t4}",
      f"v_mul_u32_u24 v{pKSR}, 144, v{t3}", f"v_add_u32 v{pKSR}, v{pKSR}, v{t4}", f"v_add_u32 v{pKSR}, {L_U}, v{pKSR}",
      f"v_lshl_add_u32 v{pKG0}, v{t3}, 12, v{t4}", f"v_add_u32 v{pKG1}, 0x8000, v{pKG0}",
      f"s_lshl_b32 s{sT0}, s{sX}, 18", f"s_lshl_b32 s{sT1}, s{sC}, 7", f"s_sub_u32 s{sT0}, s{sT0}, s{sT1}", f"s_add_u32 s{sKVS}, s{sT0}, {KVT_OFF+3968}",
      f"v_mul_u32_u24 v{pFR}, {PSTR}, v{t3}", f"v_lshl_add_u32 v{pFR}, v{t4}, 1, v{pFR}", f"v_add_u32 v{pFR}, {L_PART}, v{pFR}",
      f"s_lshl_b32 s{sT0}, s{sX}, 2", f"s_add_u32 s{sT1}, s{sT0}, s{sW}", f"s_lshl_b32 s{sT1}, s{sT1}, 5", f"s_add_u32 s{sT1}, s{sT1}, s{sC}", f"s_lshl_b32 s{sT1}, s{sT1}, 7", f"s_add_u32 s{sFA}, s{sT1}, {FA_OFF}",
      f"s_lshr_b32 s{sT1}, s{sC}, 3", f"s_add_u32 s{sT0}, s{sT0}, s{sT1}", f"s_lshl_b32 s{sT0}, s{sT0}, 12", f"s_add_u32 s{sPA}, s{sT0}, {FA_OFF}",
      f"s_lshl_b32 s{sT0}, s{sJ}, 1", f"s_lshr_b32 s{sT1}, s{sR}, 3", f"s_add_u32 s{sT0}, s{sT0}, s{sT1}", f"s_lshl_b32 s{sT0}, s{sT0}, 2", f"s_add_u32 s{sT0}, s{sT0}, s{sW}", f"s_lshl_b32 s{sT0}, s{sT0}, 11", f"s_add_u32 s{sPC}, s{sT0}, {FC_OFF}",
      f"s_lshl_b32 s{sT0}, s{sJ}, 18", f"s_lshl_b32 s{sT1}, s{sR}, 8", f"s_add_u32 s{sT0}, s{sT0}, s{sT1}", f"s_lshl_b32 s{sT1}, s{sE}, 7", f"s_add_u32 s{sT0}, s{sT0}, s{sT1}", f"s_add_u32 s{sYL}, s{sT0}, {YT_OFF}",
      f"s_lshl_b32 s{sT0}, s{sR}, 17", f"s_lshl_b32 s{sT1}, s{sE}, 16", f"s_add_u32 s{sT0}, s{sT0}, s{sT1}", f"s_lshl_b32 s{sT1}, s{sW}, 14", f"s_add_u32 s{sT0}, s{sT0}, s{sT1}",
      f"s_lshl_b32 s{sT1}, s{sJ}, 7", f"s_add_u32 s{sTILE}, s{sT0}, s{sT1}")
    A(f"s_lshl_b32 s{sT0}, s{sE}, 9", f"s_add_u32 s{sT0}, s{sT0}, {L_STAT}", f"v_lshl_add_u32 v{pSTR}, v{t3}, 3, s{sT0}",
      f"s_lshl_b32 s{sT0}, s{sW}, 5", f"v_xor_b32 v{t5}, s{sT0}, v{t4}", f"v_lshl_add_u32 v{pYW0}, v{t3}, 7, v{t5}", f"v_add_u32 v{pYW0}, {L_Z}, v{pYW0}", f"v_xor_b32 v{pYW1}, 16, v{pYW0}",
      f"v_lshl_add_u32 v{t5}, v{t4}, 6, v{t5}", f"v_lshl_add_u32 v{t5}, v{t2}, 1, v{t5}", f"v_add_u32 v{pYR0}, {L_Z}, v{t5}", f"v_xor_b32 v{pYR1}, 16, v{pYR0}",
      f"v_add_u32 v{pYG1}, 0x2000, v{pYG0}")
    A(f"v_and_b32 v{t2}, 31, v{vL}", f"v_lshlrev_b32 v{t3}, 4, v{t2}", f"v_add_u32 v{pCSR}, {L_CS}, v{t3}", f"s_lshl_b32 s{sT0}, s{sW}, 2", f"v_add_u32 v{pCSW}, s{sT0}, v{pCSR}",
      f"s_lshl_b32 s{sT0}, s{sW}, 8", f"s_add_u32 s{sT0}, s{sT0}, {L_STAT}", f"v_lshl_add_u32 v{pSTW}, v{t2}, 3, s{sT0}",
      f"s_mul_i32 s{sT0}, s{sW}, {32*PSTR}", f"s_add_u32 s{sT0}, s{sT0}, {L_PART}", f"v_mul_u32_u24 v{t3}, {PSTR}, v{t2}", f"v_lshl_add_u32 v{t3}, v{t0}, 4, v{t3}",
      f"s_lshl_b32 s{sT1}, s{sW1b}, 7", f"s_add_u32 s{sT2}, s{sT0}, s{sT1}", f"v_add_u32 v{pPW}, s{sT2}, v{t3}",
      f"s_xor_b32 s{sT1}, s{sT1}, 128", f"s_add_u32 s{sT2}, s{sT0}, s{sT1}", f"v_add_u32 v{pPW1}, s{sT2}, v{t3}")
    A(f"s_lshr_b32 s{sT0}, s{sCH}, 1", f"s_lshl_b32 s{sT0}, s{sT0}, 2", f"v_mov_b32 v{pD}, s{sT0}")

    NPRE = o.npre
    pre_part = [x for x in S[:NPRE]]
    assert not any(f"s{S_SSM}," in x for x in pre_part)
    emit(pre_part)
    I("s_waitcnt lgkmcnt(0)")
    stamp("kernarg")
    tok = {}
    kvl = []
    for i in range(3): kvl.append([f"s_add_u32 m0, s{sKVM}, {i*1024}", lambda i=i: g.vm(f"buffer_load_dwordx4 v{vX+i}, {sr(S_K,4)}, 0 offen lds")])
    for i in range(2): kvl.append([f"s_add_u32 m0, s{sKVM}, {(3+i)*1024}", lambda i=i: g.vm(f"buffer_load_dwordx4 v{vX+1+i}, {sr(S_V,4)}, 0 offen lds")])
    def kvw(): tok["kv"] = g.vm(f"global_load_dwordx2 {vr(vWT,2)}, v{vX+3}, {sr(sPSH,2)}")
    kvl.append([kvw])
    def kv_items(pos):
        out = []
        for p, it in zip(o.kv_sched, kvl):
            if p == pos: out += it
        return out
    emit(kv_items(-2))
    a, b = chunk_items(0); emit(a + b)
    I(f"s_add_u32 s6, s{S_WS}, {E_OFF}", f"s_addc_u32 s7, s{S_WS+1}, 0", f"s_load_dword s{sNON}, s[6:7], 0")
    emit(kv_items(-1))
    c1a, c1b = chunk_items(1)
    if o.c1_early: emit(c1a); c1a = []
    emit(S[NPRE:])
    if o.touch:
        I(f"v_lshlrev_b32 v{t0}, 21, v{vL}", "s_mov_b64 exec, 63")
        g.vm(f"buffer_load_dword v{vFL}, v{t0}, {sr(S_WS,4)}, 0 offen sc1")
        I("s_mov_b64 exec, 1")
        g.vm(f"buffer_load_dword v{vFL}, off, {sr(S_OUT,4)}, s{sTILE}")
        g.vm(f"buffer_load_dword v{vFL}, off, {sr(S_W2,4)}, s{sW2O}")
        I("s_mov_b64 exec, -1")
    I("s_waitcnt lgkmcnt(0)")
    I(f"s_mul_i32 s{sNON}, s{sNON}, 1664525", f"s_add_u32 s{sNON}, s{sNON}, 1013904223", f"v_mov_b32 v{vNON}, s{sNON}")
    stamp("setup")

    def flag_items(sreg):
        return ["s_mov_b64 exec, 1", lambda: g.vm(f"buffer_store_dword v{vNON}, off, {sr(S_WS,4)}, s{sreg} sc1"), "s_mov_b64 exec, -1"]
    def flag_store(sreg): emit(flag_items(sreg))
    def poll_issue(sreg, va):
        return g.vm(f"buffer_load_dword v{vFL}, v{va}, {sr(S_WS,4)}, s{sreg} offen sc1")
    def poll_check(tok, sreg, va):
        ok, lp, sl = g.label("LOK"), g.label("LPOLL"), g.label("LSLOW")
        g.wait(vm=tok)
        I(f"v_cmp_ne_u32 vcc, s{sNON}, v{vFL}", "s_nop 1", f"s_cbranch_vccnz {sl}", f"{ok}:")
        cold_code.extend([f"{sl}:", f"s_mov_b32 s{sSPIN}, 400000",
          f"{lp}:", f"buffer_load_dword v{vFL}, v{va}, {sr(S_WS,4)}, s{sreg} offen sc1", f"s_sub_u32 s{sSPIN}, s{sSPIN}, 1", "s_waitcnt vmcnt(0)",
          f"s_cbranch_scc1 {ok}", f"v_cmp_ne_u32 vcc, s{sNON}, v{vFL}", "s_nop 1", f"s_cbranch_vccnz {lp}", f"s_branch {ok}"])

    order24 = [0, 1, 2, 20, 21, 22, 23, 3, 4, 5, 12, 13, 14, 15, 6, 7, 8, 16, 17, 18, 19, 9, 10, 11]
    slot_unit = order24 + order24[:19]
    NHELD = 19
    aW2, aH, NHR = 0, 152, o.nhr
    w2_next = [0]; tok_w2 = {}
    def w2_items(cnt, avail=99):
        out = []
        for _ in range(cnt):
            n = w2_next[0]
            assert n < avail, (n, avail)
            w2_next[0] += 1
            out.append(f"s_add_u32 m0, s{sWK}, {slot_unit[n]*4096}")
            if n == 40: out.append(f"s_mov_b32 s{sW2O}, s{sW2E}")
            def f(n=n): tok_w2[n] = g.vm(f"buffer_load_dwordx4 v{vW2G+n%4}, {sr(S_W2,4)}, s{sW2O} offen lds")
            out.append(f)
            if n % 4 == 3 and n < 39:
                out += [f"s_add_u32 s{sW2O}, s{sW2O}, 65536", f"s_cmp_ge_u32 s{sW2O}, s{sW2E}", f"s_cselect_b32 s{sW2O}, s{sW2S}, s{sW2O}"]
        return out
    trd = {}
    def w2_read_items(n, dst, kind):
        u = slot_unit[n]; win, base = divmod(u, 12); out = []
        for tl in range(2):
            for hh in range(2):
                def f(tl=tl, hh=hh): trd[(n, tl)] = g.ds(f"ds_read_b64_tr_b16 {vr(dst+4*tl+2*hh,2,kind)}, v{vW2R+2*win+tl} offset:{base*4096+hh*1024}")
                out.append(f)
        return out
    def held_items(n): return w2_read_items(n, aW2 + 8 * n, "a")
    def glue(items):
        out = []; i = 0
        while i < len(items):
            x = items[i]
            if isinstance(x, str) and x.startswith("s_cmp"):
                y = items[i + 1]; out.append(lambda x=x, y=y: I(x, y)); i += 2
            elif isinstance(x, str) and x.startswith("s_mov_b64 exec, 1"):
                y, z = items[i + 1], items[i + 2]; out.append(lambda x=x, y=y, z=z: (I(x), y(), I(z))); i += 3
            else:
                out.append(x); i += 1
        return out

    tw = {}
    def w1_read_items(n):
        i, j = divmod(n, 4); b = aWF + 12 * (n % 3); out = []
        for u in range(3):
            for hh in range(2):
                def f(u=u, hh=hh): tw[(n, u)] = g.ds(f"ds_read_b64_tr_b16 {ar(b+4*u+2*hh,2)}, v{vW1R+j} offset:{(i%4)*12288+u*1024+hh*256}")
                out.append(f)
        return out
    tq = {}
    def q_read_items(i):
        out = []
        for k in range(4):
            def f(k=k): tq[(i, k)] = g.ds(f"ds_read_b128 {vr(vQF+16*(i%2)+4*k,4)}, v{vQR+k} offset:{(i%3)*16384}")
            out.append(f)
        return out
    rq, dq, fq = Q(), Q(), Q()
    def step(n, rmax=2, dmax=2):
        i, j = divmod(n, 4); b = aWF + 12 * (n % 3); q = vQF + 16 * (i % 2) + 4 * j
        for u in range(3):
            g.wait(ds=max(tw[(n, u)], tq[(i, j)]))
            c = "0" if n == 0 else vr(vACC+16*u, 16)
            I(f"v_mfma_f32_32x32x16_bf16 {vr(vACC+16*u,16)}, {ar(b+4*u,4)}, {vr(q,4)}, {c}")
            dq.pop(1); gap(4, (rq, rmax), (dq, dmax - 1), (fq, 4))
        c = "0" if n == 0 else vr(vSUM, 4)
        if not (i == 7 and j > 0):
            for jj in (range(4) if i == 7 else [j]):
                qq = vQF + 16 * (i % 2) + 4 * jj
                I(f"v_mfma_f32_16x16x32_bf16 {vr(vSUM,4)}, {vr(vMASK,4)}, {vr(qq,4)}, {c}")
                gap(2, (rq, 1), (dq, 1), (fq, 2))
        if j == 0:
            for u in range(3):
                c = "0" if n == 0 else vr(vCS+4*u, 4)
                I(f"v_mfma_f32_16x16x32_bf16 {vr(vCS+4*u,4)}, {vr(vMASK,4)}, {ar(b+4*u,4)}, {c}")
                gap(2, (rq, 1), (dq, 1), (fq, 2))
    def dot_batch(i):
        for k in range(16):
            q = vQF + 16 * (i % 2) + k
            I(f"v_dot2_f32_bf16 v{vSQ+k%4}, v{q}, v{q}, v{vSQ+k%4}")
    vSS = vS
    vCP = vS + 12
    vPK = vX + 10
    KB = o.kv_blk
    def ssm_prep_items():
        out = []
        for k in range(2):
            d = vSS + 6 * k; c = vCP + 12 * k
            out.append(lambda d=d, k=k: g.ds(f"ds_write_b128 v{pCW}, {vr(d+2,4)} offset:{32+1024*k}"))
            out += [f"v_alignbit_b32 v{c+j}, v{d+2+j}, v{d+1+j}, 16" for j in range(4)]
            out.append(lambda c=c, k=k: g.ds(f"ds_write_b128 v{pCW}, {vr(c,4)} offset:{CSTR+32+1024*k}"))
            out += [f"v_mov_b32 v{c+4+j}, v{d+1+j}" for j in range(4)]
            out.append(lambda c=c, k=k: g.ds(f"ds_write_b128 v{pCW}, {vr(c+4,4)} offset:{2*CSTR+32+1024*k}"))
            out += [f"v_alignbit_b32 v{c+8+j}, v{d+1+j}, v{d+j}, 16" for j in range(4)]
            out.append(lambda c=c, k=k: g.ds(f"ds_write_b128 v{pCW}, {vr(c+8,4)} offset:{3*CSTR+32+1024*k}"))
        out += [f"s_and_b32 s{sT0}, s{sCH}, 1", f"s_lshl_b32 s{sT0}, s{sT0}, 4", f"v_lshrrev_b32 v{pD}, s{sT0}, v{pD}", f"v_lshlrev_b32 v{pD}, 16, v{pD}"]
        return out
    flagA_done = False
    for i in range(9):
        if i <= 7: g.wait(vm=tok_chunk[i], ds=g.nds-1)
        else: g.wait(ds=g.nds-1)
        I("s_barrier")
        stamp(f"it{i}")
        pre, post = kv_items(i), []
        if i == 0:
            a, b = chunk_items(2); pre += c1a + c1b + a + b
        if i + 3 <= 7:
            a, b = chunk_items(i + 3); pre += a; post += b
        else:
            cnt = o.w2_pace[i - 5]; av = 7 * (i - 5) + 3
            k = max(0, min(cnt, av - w2_next[0], (cnt + 1) // 2))
            pre += w2_items(k, av)
            if i <= 7: post += w2_items(cnt - k, av + 4)
            else: pre += w2_items(cnt - k, av)
        if i == KB + 1:
            def kvrd0(): g.ds(f"ds_read_b128 {vr(vPK,4)}, v{pKSR}")
            def kvrd1(): tok["kvr"] = g.ds(f"ds_read_b128 {vr(vPK+4,4)}, v{pKSR} offset:{8*144}")
            rq.add(kvrd0, kvrd1)
            def kvst0(): g.vm(f"buffer_store_dwordx4 {vr(vPK,4)}, v{pKG0}, {sr(S_WS,4)}, s{sKVS} offen sc1")
            def kvst1(): tok["kvst"] = g.vm(f"buffer_store_dwordx4 {vr(vPK+4,4)}, v{pKG1}, {sr(S_WS,4)}, s{sKVS} offen sc1")
            post = [kvst0, kvst1] + post
        if not flagA_done and "kvst" in tok and (g.vm_done >= tok["kvst"] or i == KB + 1 + o.flaga_lag or i == 8):
            g.wait(vm=tok["kvst"]); pre = flag_items(sFA) + pre; flagA_done = True
        if i == o.ssm_at:
            def s0(): g.vm(f"buffer_load_dwordx2 {vr(vSS,2)}, v{vCP}, {sr(S_SSM,4)}, 0 offen")
            def s1(): g.vm(f"buffer_load_dwordx4 {vr(vSS+2,4)}, v{pSSM}, {sr(S_SSM,4)}, 0 offen")
            def s2(): g.vm(f"buffer_load_dwordx2 {vr(vSS+6,2)}, v{pSSM}, {sr(S_SSM,4)}, 0 offen offset:1016")
            def s3(): g.vm(f"buffer_load_dwordx4 {vr(vSS+8,4)}, v{pSSM}, {sr(S_SSM,4)}, 0 offen offset:1024")
            def s4(): tok["ssm"] = g.vm(f"global_load_dword v{pD}, v{pD}, {sr(sPD,2)}")
            pre = [f"v_add_u32 v{vCP}, -8, v{pSSM}", s0, s1, s2, s3, s4] + pre
        if "ssm" in tok and "ssmprep" not in tok and g.vm_done >= tok["ssm"] and i <= 7:
            tok["ssmprep"] = 1; fq.add(*ssm_prep_items())
        if i == o.polla_at:
            def pa(): tok["pollA"] = poll_issue(sPA, vF1)
            pre = [pa] + pre
        if i <= 7:
            rq.add(*q_read_items(i)); rq.add(*w1_read_items(4 * i))
        else:
            tcs = {}
            for u in range(3):
                def f(u=u): tcs[u] = g.ds(f"ds_read_b128 {vr(vCS+4*u,4)}, v{pCSR} offset:{u*512}")
                rq.add(f)
        dq.add(*glue(pre))
        if i > 0:
            step(4 * i - 2, rmax=3); rq.flush()
            if i <= 7: rq.add(*w1_read_items(4 * i + 1))
            step(4 * i - 1); rq.flush()
        else:
            rq.flush(); rq.add(*w1_read_items(1)); rq.flush(); dq.pop(8)
        if i == 8: break
        rq.add(*w1_read_items(4 * i + 2))
        g.wait(ds=tq[(i, 3)])
        dq.add(*glue(post))
        step(4 * i); rq.flush()
        rq.add(*w1_read_items(4 * i + 3))
        if i == 7:
            fq.flush()
            fq.add(f"v_and_b32 v{t0}, 16, v{vL}", f"v_cmp_ne_u32 vcc, 0, v{t0}")
            for u in range(3):
                fq.add(f"v_cndmask_b32 v{t3}, v{vCS+4*u}, v{vCS+4*u+1}, vcc", f"v_cvt_pk_bf16_f32 v{t4}, v{t3}, v{t3}", f"v_lshlrev_b32 v{t4}, 16, v{t4}",
                       f"v_sub_f32 v{t3}, v{t3}, v{t4}", f"v_cvt_pk_bf16_f32 v{vCS+4*u+2}, v{t4}, v{t3}",
                       lambda u=u: g.ds(f"ds_write_b32 v{pCSW}, v{vCS+4*u+2} offset:{u*512}"))
        step(4 * i + 1); rq.flush()
        if i == 7: fq.flush()
        dot_batch(i)
        dq.flush()
        if i == KB:
            vK, vV, vO, vKS = vX, vX+10, vX+18, vX+28
            vWA, vWB = t0, t1
            g.wait(vm=tok["kv"])
            stamp("kv_landed")
            tk = [g.ds(f"ds_read_b64_tr_b16 {vr(vK+2*j,2)}, v{pKTR} offset:{512+512*j}") for j in range(5)]
            tv = [g.ds(f"ds_read_b64_tr_b16 {vr(vV+2*j,2)}, v{pKTR} offset:{3072+512*j}") for j in range(4)]
            I(f"v_alignbit_b32 v{vWA}, v{vWT}, v{vWT}, 16", f"v_alignbit_b32 v{vWB}, v{vWT+1}, v{vWT+1}, 16")
            g.wait(ds=tk[4])
            for j in range(9): I(f"v_alignbit_b32 v{vO+j}, v{vK+j+1}, v{vK+j}, 16")
            for a in range(8):
                I(f"v_dot2_f32_bf16 v{vKS+2*a}, v{vO+a}, v{vWB}, 0", f"v_dot2_f32_bf16 v{vKS+2*a+1}, v{vK+a+1}, v{vWB}, 0")
            for a in range(8):
                I(f"v_dot2_f32_bf16 v{vKS+2*a}, v{vO+a+1}, v{vWA}, v{vKS+2*a}", f"v_dot2_f32_bf16 v{vKS+2*a+1}, v{vK+a+2}, v{vWA}, v{vKS+2*a+1}")
            g.wait(ds=tv[3])
            vf = [vK + 2*a for a in range(4)] + [vO + 2*a for a in range(4)]
            for a in range(8):
                I(f"v_lshlrev_b32 v{vf[a]}, 16, v{vV+a}", f"v_and_b32 v{vf[a]+1}, 0xffff0000, v{vV+a}")
            for a in range(8):
                I(f"v_pk_mul_f32 {vr(vKS+2*a,2)}, {vr(vKS+2*a,2)}, {vr(vf[a],2)}")
            for j in range(8):
                I(f"v_cvt_pk_bf16_f32 v{vPK+j}, v{vKS+15-2*j}, v{vKS+14-2*j}")
            g.ds(f"ds_write_b128 v{pKSW}, {vr(vPK,4)}"); g.ds(f"ds_write_b128 v{pKSW}, {vr(vPK+4,4)} offset:16")
            stamp("kv_done")
        if i == 7:
            I(f"v_cndmask_b32 v{t0}, v{vSUM}, v{vSUM+1}, vcc",
              f"v_add_f32 v{vSQ}, v{vSQ}, v{vSQ+1}", f"v_add_f32 v{vSQ+2}, v{vSQ+2}, v{vSQ+3}", f"v_mul_f32 v{t0}, 0x3b000000, v{t0}", f"v_add_f32 v{vSQ}, v{vSQ}, v{vSQ+2}", f"v_mov_b32 v{vSQ+1}, v{vSQ}")
            fq.add(f"v_permlane32_swap_b32 v{vSQ}, v{vSQ+1}", f"v_add_f32 v{vSQ}, v{vSQ}, v{vSQ+1}", f"v_mul_f32 v{vSQ}, 0x3b000000, v{vSQ}",
              f"v_fma_f32 v{vSQ}, -v{t0}, v{t0}, v{vSQ}", f"v_max_f32 v{vSQ}, 0, v{vSQ}",
              f"v_cvt_pk_bf16_f32 v{t3}, v{t0}, v{vSQ}",
              f"v_lshlrev_b32 v{t0}, 16, v{t3}", f"v_and_b32 v{t4}, 0xffff0000, v{t3}",
              f"v_cvt_pk_bf16_f32 v{t3}, -v{t0}, -v{t0}", f"v_cmp_gt_u32 vcc, 32, v{vL}",
              f"v_add_f32 v{t4}, 0x3727c5ac, v{t4}", f"v_cvt_pk_bf16_f32 v{t4}, v{t4}, v{t4}",
              f"v_cndmask_b32 v{vSUM}, 0, v{t3}, vcc", f"v_mov_b32 v{vSUM+1}, v{vSUM}", f"v_mov_b32 v{vSUM+2}, v{vSUM}", f"v_mov_b32 v{vSUM+3}, v{vSUM}",
              "MARK",
              f"v_lshlrev_b32 v{t4}, 16, v{t4}", f"v_sqrt_f32 v{t4}, v{t4}", f"v_cvt_pk_bf16_f32 v{t4}, v{t4}, v{t4}", f"v_lshlrev_b32 v{vSD}, 16, v{t4}", f"v_mov_b32 v{vSD+1}, v{vSD}",
              f"v_rcp_f32 v{t1}, v{vSD}", f"v_mul_f32 v{vC1}, 0xbfb8aa3b, v{t1}", f"v_mov_b32 v{vC1+1}, v{vC1}",
              lambda: g.ds(f"ds_write_b64 v{pSTW}, {vr(t0,2)}"))
    while "MARK" in fq.q: fq.pop(1)
    g.wait(ds=tcs[2])
    for u in range(3):
        I(f"v_mfma_f32_32x32x16_bf16 {vr(vACC+16*u,16)}, {vr(vCS+4*u,4)}, {vr(vSUM,4)}, {vr(vACC+16*u,16)}")
        gap(5, (fq, 5), (dq, 5))
    dq.flush(); fq.flush()
    g.L = [x for x in g.L if x != "MARK"]
    vKT = vQF
    def kvt_load():
        poll_check(tok["pollA"], sPA, vF1)
        g.vm(f"buffer_load_dwordx4 {vr(vKT,4)}, v{vL16}, {sr(S_WS,4)}, s{sKVL} offen sc1")
        tok["kvt"] = g.vm(f"buffer_load_dwordx4 {vr(vKT+4,4)}, v{vL16}, {sr(S_WS,4)}, s{sKVL} offen offset:1024 sc1")
        stamp("pollA")
    vE = vQF + 16
    vHP = vX
    for u in range(3):
        if o.polla_at == 9 + u: tok["pollA"] = poll_issue(sPA, vF1)
        if o.kvt_at == u: kvt_load()
        a = vACC + 16 * u; p = vHP + 8 * u
        dq.add(*glue(w2_items(o.w2_pace[4 + u], 24)))
        for k in range(8): I(f"v_pk_mul_f32 {vr(vE+2*k,2)}, {vr(a+2*k,2)}, {vr(vC1,2)}")
        for k in range(16):
            I(f"v_exp_f32 v{vE+k}, v{vE+k}")
            if k % 4 == 1: dq.pop(1)
        for k in range(8): I(f"v_pk_fma_f32 {vr(vE+2*k,2)}, {vr(vE+2*k,2)}, {vr(vSD,2)}, {vr(vSD,2)}")
        for k in range(16):
            I(f"v_rcp_f32 v{vE+k}, v{vE+k}")
            if k % 4 == 1: dq.pop(1)
        dq.flush()
        for k in range(8): I(f"v_pk_mul_f32 {vr(vE+2*k,2)}, {vr(vE+2*k,2)}, {vr(a+2*k,2)}")
        for kk in range(2):
            for k in range(4): I(f"v_cvt_pk_bf16_f32 v{p+4*kk+k}, v{vE+8*kk+2*k}, v{vE+8*kk+2*k+1}")
            if u < 2: tok["hst"] = g.vm(f"buffer_store_dwordx4 {vr(p+4*kk,4)}, v{vL16}, {sr(S_WS,4)}, s{sHST} offen offset:{(2*u+kk)*1024} sc1")
            else: tok["hst"] = g.vm(f"buffer_store_dwordx4 {vr(p+4*kk,4)}, v{vL16}, {sr(S_WSU,4)}, s{sHST2} offen offset:{kk*1024} sc1")
    stamp("silu")
    if o.kvt_at == 3: kvt_load()
    emit(w2_items(24 - w2_next[0], 24))
    if "ssmprep" not in tok:
        g.wait(vm=tok["ssm"]); emit(ssm_prep_items())
    for j in range(4): I(f"v_mov_b32 v{vACC+j}, 0")
    I("s_mov_b32 exec_hi, 63")
    g.ds(f"ds_write_b128 v{pZW}, {vr(vACC,4)}")
    I("s_mov_b32 exec_hi, -1")
    g.wait(vm=tok["kvt"])
    flagB_done = False
    def try_flagB(force=False):
        nonlocal flagB_done
        if not flagB_done and (force or g.vm_done >= tok["hst"]):
            g.wait(vm=tok["hst"]); flag_store(sFB); flagB_done = True; stamp("flagB")
    try_flagB()
    g.ds(f"ds_write_b128 v{pUW}, {vr(vKT,4)}")
    g.ds(f"ds_write_b128 v{pUW}, {vr(vKT+4,4)} offset:1024")
    g.wait(vm=tok_w2[10], ds=g.nds-1); I("s_barrier")
    stamp("Bb")
    vY = vACC
    vFR = 96
    tcv = {}
    def conv_read_items(st):
        b = vFR + 64 * (st % 2); out = []
        def fa(a, hh): tcv[(st, "a", a)] = g.ds(f"ds_read_b64 {vr(b+4*a+2*hh,2)}, v{pA} offset:{64*st+512*a+8*hh}")
        def fb(a): tcv[(st, "b", a)] = g.ds(f"ds_read_b128 {vr(b+32+4*a,4)}, v{pB} offset:{512*(7-a)+64*st}")
        out += [lambda: fa(0, 0), lambda: fa(0, 1)]
        for a in range(8): out.append(lambda a=a: fb(a))
        for a in range(1, 8): out += [lambda a=a: fa(a, 0), lambda a=a: fa(a, 1)]
        return out
    rq.add(*conv_read_items(0)); rq.pop(12)
    tok_h = {}; h_next = [0]
    def h_items(cnt):
        out = []
        for _ in range(cnt):
            n = h_next[0]
            if n >= 43: break
            h_next[0] += 1
            if n == 40: out.append(f"s_mov_b32 s{sHO}, s{sHE}")
            def f(n=n): tok_h[n] = g.vm(f"buffer_load_dwordx4 {ar(aH+4*(n%NHR),4)}, v{vL16}, {sr(S_WS,4)}, s{sHO} offen offset:{(n%4)*1024} sc1")
            out.append(f)
            if n % 4 == 3 and n < 39:
                out += [f"s_add_u32 s{sHO}, s{sHO}, 4096", f"s_cmp_ge_u32 s{sHO}, s{sHE}", f"s_cselect_b32 s{sHO}, s{sHS}, s{sHO}"]
        return out
    pollB_checked = False
    hq = Q()
    for st in range(4):
        b = vFR + 64 * (st % 2)
        if st < 3: rq.add(*conv_read_items(st + 1))
        if st == 0:
            for n in range(0, 11): fq.add(*held_items(n))
        if st == 1:
            dq.add(*glue(w2_items(11)))
            for n in range(11, 19): fq.add(*held_items(n))
        if st == 2:
            dq.add(*glue(w2_items(8)))
        pairs = sorted((a, s - a) for s in range(8) for a in range(s + 1))
        first = set()
        for idx, (a, bb) in enumerate(pairs):
            acc = vY + 4 * (a + bb)
            c = "0" if (st == 0 and (a + bb) not in first) else vr(acc, 4)
            first.add(a + bb)
            g.wait(ds=max(tcv[(st, "a", a)], tcv[(st, "b", bb)]))
            I(f"v_mfma_f32_16x16x32_bf16 {vr(acc,4)}, {vr(b+4*a,4)}, {vr(b+32+4*bb,4)}, {c}")
            gap(2, (rq, 1), (fq, 1), (dq, 1), (fq, 1))
            if idx % 4 == 0: hq.pop(1)
            if (st, idx) == o.flagb_at: try_flagB(True)
            if (st, idx) == o.pollb_at: tp = poll_issue(sPB, vF2)
            if (st, idx) == o.chkb_at:
                poll_check(tp, sPB, vF2); pollB_checked = True; stamp("pollB")
                hq.add(*glue(h_items(o.h_early)))
        rq.flush(); fq.flush(); dq.flush()
        if st == 0:
            g.wait(vm=tok_w2[18], ds=g.nds-1); try_flagB(); I("s_barrier")
        if st == 1:
            g.wait(ds=g.nds-1); I("s_barrier")
    assert flagB_done
    stamp("conv")
    vU = vFR; vUF = vFR + 8; vYK = vFR + 24
    tu = [g.ds(f"ds_read_b64 {vr(vU+2*k,2)}, v{pUR} offset:{1536-512*k}") for k in range(4)]
    if not pollB_checked:
        poll_check(tp, sPB, vF2); stamp("pollB")
        hq.add(*glue(h_items(o.h_early)))
    hq.flush()
    lo, lj = g.label("LO"), g.label("LJ")
    g.wait(ds=tu[3])
    for k in range(4):
        I(f"v_and_b32 v{vUF+4*k}, 0xffff0000, v{vU+2*k+1}", f"v_lshlrev_b32 v{vUF+4*k+1}, 16, v{vU+2*k+1}",
          f"v_and_b32 v{vUF+4*k+2}, 0xffff0000, v{vU+2*k}", f"v_lshlrev_b32 v{vUF+4*k+3}, 16, v{vU+2*k}")
    I(f"s_cmp_lg_u32 s{sW0b}, 0", f"s_cbranch_scc1 {lo}")
    sv = (g.nds, g.ds_done)
    for par in range(2):
        g.nds, g.ds_done = sv
        keep, send = (vY, vY + 16) if par == 0 else (vY + 16, vY)
        for k in range(4):
            g.ds(f"ds_write_b128 v{pEXW}, {vr(send+4*k,4)} offset:{k*1024}")
            for j in range(4): I(f"v_fma_f32 v{vYK+4*k+j}, v{vUF+4*k+j}, v{pD}, v{keep+4*k+j}")
        if par == 0: I(f"s_branch {lj}", f"{lo}:")
    I(f"{lj}:")
    g.wait(ds=g.nds-1); I("s_barrier")
    vYX = vFR + 40
    tx = [g.ds(f"ds_read_b128 {vr(vYX+4*k,4)}, v{pEXR} offset:{k*1024}") for k in range(4)]
    vYP = vFR + 56
    for pr in range(2):
        g.wait(ds=tx[2*pr+1])
        for k in range(4): I(f"v_pk_add_f32 {vr(vYK+8*pr+2*k,2)}, {vr(vYK+8*pr+2*k,2)}, {vr(vYX+8*pr+2*k,2)}")
        for k in range(4): I(f"v_cvt_pk_bf16_f32 v{vYP+4*pr+k}, v{vYK+8*pr+2*k}, v{vYK+8*pr+2*k+1}")
        I(f"v_permlane16_swap_b32 v{vYP+4*pr}, v{vYP+4*pr+2}", f"v_permlane16_swap_b32 v{vYP+4*pr+1}, v{vYP+4*pr+3}")
        tok["yst"] = g.vm(f"buffer_store_dwordx4 {vr(vYP+4*pr,4)}, v{pYS}, {sr(S_WS,4)}, s{sYS} offen offset:{pr*1024} sc1")
    stamp("yst")
    vO2 = vACC
    vW2F = 96
    vYL, vXR, vST, vXF, vXN, vYV = 120, 128, 136, 144, 160, 176
    g.vm(f"buffer_load_dwordx4 {vr(vXR,4)}, v{pYG0}, {sr(S_Q,4)}, s{sTILE} offen")
    tok["x"] = g.vm(f"buffer_load_dwordx4 {vr(vXR+4,4)}, v{pYG1}, {sr(S_Q,4)}, s{sTILE} offen")
    g.ds(f"ds_read_b64 {vr(vST,2)}, v{pSTR}"); tst = g.ds(f"ds_read_b64 {vr(vST+2,2)}, v{pSTR} offset:64")
    emit(h_items(o.h_pre - h_next[0]))
    flagc_done = False; xdone = False; ywr = False
    for n in range(43):
        if NHELD <= n + 2 < 43: rq.add(*w2_read_items(n + 2, vW2F + 8 * ((n + 2) % 3), "v"))
        room = n + NHR - h_next[0]
        dq.add(*glue(h_items(min(room, 2))))
        for tl in range(2):
            g.wait(vm=tok_h[n], ds=trd.get((n, tl)) if n >= NHELD else None)
            a = ar(aW2 + 8 * n + 4 * tl, 4) if n < NHELD else vr(vW2F + 8 * (n % 3) + 4 * tl, 4)
            c = "0" if n == 0 else vr(vO2 + 16 * tl, 16)
            I(f"v_mfma_f32_32x32x16_bf16 {vr(vO2+16*tl,16)}, {a}, {ar(aH+4*(n%NHR),4)}, {c}")
            gap(5, (rq, 2), (dq, 2), (fq, 5))
        rq.flush(); dq.flush()
        if not flagc_done and (g.vm_done >= tok["yst"] or n == o.flagc_at):
            g.wait(vm=tok["yst"]); flag_store(sFC); flagc_done = True; stamp("flagC")
        if not xdone and g.vm_done >= tok["x"]:
            xdone = True; g.wait(ds=tst)
            for i in range(2): fq.add(f"v_mul_f32 v{vST+4+i}, v{vST+2*i}, v{vST+2*i+1}")
            for k in range(8): fq.add(f"v_lshlrev_b32 v{vXF+2*k}, 16, v{vXR+k}", f"v_and_b32 v{vXF+2*k+1}, 0xffff0000, v{vXR+k}")
            for k in range(16): fq.add(f"v_fma_f32 v{vXN+k}, v{vXF+k}, v{vST+2*(k//8)+1}, -v{vST+4+k//8}")
            for k in range(16): fq.add(f"v_mov_b32 v{vYV+k}, 0")
        if n == 15:
            le, lb = g.label("LE"), g.label("LB")
            I("s_cmp_eq_u32 s2, 0", f"s_cbranch_scc1 {le}", f"{lb}:")
            save = g.L; g.L = []
            I(f"{le}:", f"v_lshrrev_b32 v{t0}, 5, v{vL}", f"v_lshlrev_b32 v{t0}, 14, v{t0}", f"v_and_b32 v{t1}, 31, v{vL}", f"v_lshl_add_u32 v{t0}, v{t1}, 7, v{t0}",
              f"s_lshl_b32 s{sT0}, s{sW}, 15", f"s_add_u32 s{sT1}, s{sT0}, {FA_OFF}", f"v_not_b32 v{vFL}, v{vNON}")
            svm = g.vm_done; poll_check(g.vm_done, sT1, t0); g.vm_done = svm
            I(f"s_branch {lb}")
            cold_code.extend(g.L); g.L = save
            g.wait(vm=tok_w2[42]); I("s_barrier")
            le2, lb2 = g.label("LE"), g.label("LB")
            I(f"s_or_b32 s{sT0}, s2, s{sW}", f"s_cbranch_scc0 {le2}", f"{lb2}:")
            cold_code.extend([f"{le2}:", f"s_mov_b32 s{sT1}, {E_OFF}", "s_mov_b64 exec, 1",
              f"buffer_store_dword v{vNON}, off, {sr(S_WS,4)}, s{sT1} sc1", "s_mov_b64 exec, -1", f"s_branch {lb2}"])
        if n == o.pollc_at:
            tpc = poll_issue(sPC, vF2)
        if n == o.ychk_at:
            poll_check(tpc, sPC, vF2)
            g.vm(f"buffer_load_dwordx4 {vr(vYL,4)}, v{pKG0}, {sr(S_WS,4)}, s{sYL} offen sc1")
            ty = g.vm(f"buffer_load_dwordx4 {vr(vYL+4,4)}, v{pKG1}, {sr(S_WS,4)}, s{sYL} offen sc1")
            stamp("pollC")
    fq.flush()
    stamp("gemm2")
    for q in range(4): g.ds(f"ds_write_b128 v{pPW}, {vr(vO2+4*q,4)} offset:{32*q}")
    for q in range(4): g.ds(f"ds_write_b128 v{pPW1}, {vr(vO2+16+4*q,4)} offset:{32*q}")
    g.wait(vm=ty)
    g.ds(f"ds_write_b128 v{pYW0}, {vr(vYL,4)}"); g.ds(f"ds_write_b128 v{pYW1}, {vr(vYL+4,4)} offset:1024")
    g.wait(ds=g.nds-1); I("s_barrier")
    stamp("fin_bar")
    vF0 = 64
    tf = {}
    for i in range(2):
        for j in range(8): g.ds(f"ds_read_u16_d16_hi v{vYV+8*i+j}, v{pYR0+i} offset:{j*128}")
        for p in range(2):
            for h in range(2):
                tf[i] = g.ds(f"ds_read_b128 {vr(vF0+16*i+8*p+4*h,4)}, v{pFR} offset:{i*8*PSTR+p*64*PSTR+16*h}")
    for i in range(2):
        g.wait(ds=tf[i])
        for k in range(4): I(f"v_pk_fma_f32 {vr(vXF+8*i+2*k,2)}, {vr(vXN+8*i+2*k,2)}, {vr(vYV+8*i+2*k,2)}, {vr(vXF+8*i+2*k,2)}")
        for k in range(4): I(f"v_pk_add_f32 {vr(vF0+16*i+2*k,2)}, {vr(vF0+16*i+2*k,2)}, {vr(vF0+16*i+8+2*k,2)}")
        for k in range(4): I(f"v_pk_add_f32 {vr(vF0+16*i+2*k,2)}, {vr(vF0+16*i+2*k,2)}, {vr(vXF+8*i+2*k,2)}")
        for k in range(4): I(f"v_cvt_pk_bf16_f32 v{vF0+32+4*i+k}, v{vF0+16*i+2*k}, v{vF0+16*i+2*k+1}")
        g.vm(f"buffer_store_dwordx4 {vr(vF0+32+4*i,4)}, v{pYG0+i}, {sr(S_OUT,4)}, s{sTILE} offen")
    finish()
    return g, stamp_regs

HEADER = open("cdna_kernels/" + NAME + ".s.ref").read().split("; Override launch")[0]

def render(o):
    g, names = gen(o)
    body = pad_hazards(g.L)
    out = [HEADER.rstrip("\n"), f"; @launch grid=(256,1,1) block=(256,1,1) lds={LDS_BYTES}",
           '.amdgcn_target "amdgcn-amd-amdhsa--gfx950"', ".text", f".globl {NAME}_kernel", ".p2align 8", f".type {NAME}_kernel,@function", f"{NAME}_kernel:"]
    out += [("" if l.endswith(":") else "    ") + l for l in body]
    out.append(f""".section .rodata,"a"
.p2align 6
.amdhsa_kernel {NAME}_kernel
  .amdhsa_next_free_vgpr 512
  .amdhsa_next_free_sgpr 102
  .amdhsa_accum_offset 256
  .amdhsa_group_segment_fixed_size 0
  .amdhsa_kernarg_size 96
  .amdhsa_user_sgpr_count 2
  .amdhsa_user_sgpr_kernarg_segment_ptr 1
  .amdhsa_system_sgpr_workgroup_id_x 1
.end_amdhsa_kernel""")
    return "\n".join(out) + "\n", names

def parse(argv=None):
    import argparse
    ap = argparse.ArgumentParser()
    ap.add_argument("-o", default="cdna_kernels/" + NAME + ".s")
    ap.add_argument("--stamps", action="store_true")
    ap.add_argument("--npre", type=int, default=60)
    ap.add_argument("--kv", default="-1,-1,-1,0,0,0")
    ap.add_argument("--kv_blk", type=int, default=0)
    ap.add_argument("--c1_early", type=int, default=0)
    ap.add_argument("--flaga_lag", type=int, default=9)
    ap.add_argument("--polla_at", type=int, default=7)
    ap.add_argument("--kvt_at", type=int, default=0)
    ap.add_argument("--ssm_at", type=int, default=3)
    ap.add_argument("--pace", default="4,4,4,3,3,3,3")
    ap.add_argument("--touch", type=int, default=0)
    ap.add_argument("--flagb", default="1,0")
    ap.add_argument("--pollb", default="3,10")
    ap.add_argument("--chkb", default="9,9")
    ap.add_argument("--h_early", type=int, default=8)
    ap.add_argument("--h_pre", type=int, default=12)
    ap.add_argument("--nhr", type=int, default=24)
    ap.add_argument("--flagc", type=int, default=99)
    ap.add_argument("--pollc", type=int, default=24)
    ap.add_argument("--ychk", type=int, default=38)
    a = ap.parse_args(argv)
    T = lambda s: tuple(int(x) for x in s.split(","))
    a.flagb_at, a.pollb_at, a.chkb_at, a.kv_sched, a.w2_pace = T(a.flagb), T(a.pollb), T(a.chkb), T(a.kv), T(a.pace)
    a.flagc_at, a.pollc_at, a.ychk_at = a.flagc, a.pollc, a.ychk
    return a

if __name__ == "__main__":
    a = parse()
    s, names = render(a)
    open(a.o, "w").write(s)
    if a.stamps: open(a.o + ".names", "w").write("\n".join(names))
```

```python
import sys
from asmlib import *

NAME = "parallel_sum__ssm_conv_h3__dense_activation_silu__prompt"

H_OFF, KVT_OFF, YT_OFF = 0, 0x600000, 0x800000
FA_OFF, FB_OFF, FC_OFF, E_OFF, DBG_OFF = 0xA00000, 0xA20000, 0xA40000, 0xA60000, 0xB00000
WS_BYTES = 0x1000000
L_W1, L_Q = 0, 49152
L_SSM, CSTR = 98304, 4160
L_U, USTR = 131584, 4608
L_CS, L_STAT = 140800, 142336
L_Z = 143360
L_PART, PSTR = L_SSM, 272
L_YI = L_SSM + 2*64*272
L_EX = L_SSM
LDS_BYTES = 163840
S_Q, S_K, S_V, S_W1, S_W1U, S_W2, S_SSM, S_WS, S_WSU, S_OUT = 28, 32, 36, 40, 44, 48, 52, 56, 60, 64
sX, sC, sW, sR, sJ, sE, sNON, sUS, sKAP, sOQ, sOW, sWK = 68, 69, 70, 71, 72, 73, 74, 75, 76, 77, 78, 79
sT0, sT1, sT2, sT3 = 80, 81, 82, 83
sW2O, sW2S, sW2E, sHO, sHS, sHE = 84, 85, 86, 87, 88, 89
sSPIN, sW3K, sHST, sHST2 = 90, 91, 92, 93
sCH, sS32 = 8, 9
sPSH, sPD = 10, 14
sKVS, sFA, sPA, sPB, sPC, sFB, sFC, sYS, sKVL, sYL, sZP, sTILE, sKVM, sW1b, sW0b = 12, 13, 16, 17, 18, 19, 20, 21, 22, 23, 24, 25, 26, 27, 3

class Opt:
    stop = 99; stamps = False

def gen(o):
    g = Gen(); I = g.I
    stamp_regs = []
    cold_code = []
    def stamp(name):
        if not o.stamps: return
        idx = len(stamp_regs); stamp_regs.append(name)
        I("s_memtime s[94:95]", "s_waitcnt lgkmcnt(0)", f"v_writelane_b32 v255, s94, {idx}")
        g.ds_done = g.nds - 1
    def finish():
        if o.stamps:
            stamp("end")
            I("s_memrealtime s[94:95]", "s_waitcnt lgkmcnt(0)", "v_writelane_b32 v255, s94, 62", f"v_writelane_b32 v255, s96, 63")
            I(f"s_lshl_b32 s{sT0}, s2, 2", f"s_add_u32 s{sT0}, s{sT0}, s{sW}", f"s_lshl_b32 s{sT0}, s{sT0}, 8", f"s_add_u32 s{sT0}, s{sT0}, {DBG_OFF}")
            I("v_lshlrev_b32 v254, 2, v1")
            g.vm(f"buffer_store_dword v255, v254, {sr(S_WS,4)}, s{sT0} offen")
        I("LEND:", "s_endpgm")
        for x in cold_code: I(x)

    class Q:
        def __init__(s): s.q = []
        def add(s, *x): s.q.extend(x)
        def pop(s, n=1):
            k = 0
            while s.q and k < n:
                x = s.q.pop(0); k += 1
                if callable(x): x()
                else: I(x)
            return k
        def flush(s): s.pop(10**9)
        def __len__(s): return len(s.q)
    def gap(budget, *qs):
        for q, mx in qs:
            budget -= q.pop(min(budget, mx))
            if budget <= 0: break

    vL = 1
    vQG = 2
    vW1G = 6
    vL16 = 7
    vQR = 8
    vW1R = 12
    vW2G = 16
    vW2R = 20
    vT = 26
    vMASK = 32
    vSUM = 36
    vCS = 40
    vSQ = 52
    vNON, vFL = 56, 57
    vF1, vF2 = 58, 59
    vC1 = 60
    vSD = 62
    vACC = 64
    vQF = 112
    aWF = 216
    vS = 144
    vX = 180
    vP = 224
    (pKTR, pKSW, pKSR, pKG0, pKG1, pCSW, pCSR, pSTW, pSSM, pCW, pUW, pZW, pA, pB, pEXW, pEXR, pUR, pYS, pD,
     pYG0, pYG1, pYW0, pYW1, pYR0, pYR1, pSTR, pPW, pPW1, pFR) = range(vP, vP + 29)
    vWT = vS
    t0, t1, t2, t3, t4, t5 = range(vT, vT + 6)

    I(f"s_cmp_ge_u32 s2, 256", "s_cbranch_scc1 LEND")
    if o.stamps:
        I("s_memrealtime s[96:97]"); stamp("entry")
    for srd, off in ((S_Q, 0), (S_W1, 56), (S_W1U, 56), (S_K, 8), (S_V, 16), (sPSH, 24), (S_WS, 88), (S_WSU, 88), (S_SSM, 32), (sPD, 40), (S_W2, 64), (S_OUT, 72)):
        I(f"s_load_dwordx2 {sr(srd,2)}, s[0:1], {off}")
    I("s_getpc_b64 s[4:5]", "LPC:")
    I(f"v_and_b32 v{vL}, 63, v0", f"v_lshrrev_b32 v{t0}, 6, v0")
    I(f"s_and_b32 s{sX}, s2, 7", f"s_lshr_b32 s{sC}, s2, 3")
    I(f"v_readfirstlane_b32 s{sW}, v{t0}")
    I(f"s_lshl_b32 s{sT0}, s{sC}, 2", f"s_add_u32 s{sT0}, s{sT0}, s{sW}", f"s_lshl_b32 s{sT0}, s{sT0}, 8")
    I(f"v_lshlrev_b32 v{t0}, 7, v{vL}", f"v_add_u32 v{t0}, s{sT0}, v{t0}", f"v_min_u32 v{t0}, LEND-LPC, v{t0}")
    I("s_mov_b64 exec, 3")
    g.vm(f"global_load_dword v{vFL}, v{t0}, s[4:5]")
    I("s_mov_b64 exec, -1")
    I(f"s_mov_b32 s{S_K+3}, 0x20000", f"s_mov_b32 s{S_K+2}, 0x200000")
    for srd in (S_V, S_Q): I(f"s_mov_b32 s{srd+3}, s{S_K+3}", f"s_mov_b32 s{srd+2}, s{S_K+2}")
    I(f"s_mov_b32 s{S_W1+3}, s{S_K+3}", f"s_mov_b32 s{S_W1+2}, {512*1376*2}", f"s_mov_b32 s{S_W1U+3}, s{S_K+3}")
    I(f"s_and_b32 s{sE}, s{sX}, 1", f"s_and_b32 s{sJ}, s{sC}, 7", f"s_lshr_b32 s{sT0}, s{sC}, 3",
      f"s_lshr_b32 s{sR}, s{sX}, 1", f"s_lshl_b32 s{sR}, s{sR}, 2", f"s_add_u32 s{sR}, s{sR}, s{sT0}")
    if o.G == 8: I(f"s_lshl_b32 s{sKAP}, s{sT0}, 1", f"s_add_u32 s{sKAP}, s{sKAP}, s{sJ}", f"s_and_b32 s{sKAP}, s{sKAP}, 7")
    else: I(f"s_add_u32 s{sKAP}, s{sT0}, s{sJ}", f"s_and_b32 s{sKAP}, s{sKAP}, {o.G-1}")
    I(f"s_mul_i32 s{sUS}, s{sE}, 22", f"s_mul_i32 s{sT1}, s{sJ}, 3", f"s_add_u32 s{sUS}, s{sUS}, s{sT1}",
      f"s_add_u32 s{sT1}, s{sJ}, s{sE}", f"s_max_u32 s{sT2}, s{sT1}, 6", f"s_sub_u32 s{sT2}, s{sT2}, 6", f"s_sub_u32 s{sUS}, s{sUS}, s{sT2}",
      f"s_cmp_lt_u32 s{sT1}, 6", f"s_cselect_b32 s{S_W1U+2}, s{S_W1+2}, 0", f"s_cselect_b32 s{S_WSU+2}, {WS_BYTES}, 0")
    I(f"s_lshl_b32 s{sWK}, s{sW}, 10", f"s_mul_i32 s{sW3K}, s{sW}, 3072", f"s_and_b32 s{sW0b}, s{sW}, 1", f"s_lshr_b32 s{sW1b}, s{sW}, 1")
    I(f"v_lshrrev_b32 v{t1}, 3, v{vL}", f"v_lshlrev_b32 v{t1}, 10, v{t1}", f"v_and_b32 v{t2}, 7, v{vL}", f"v_lshl_add_u32 v{t3}, v{t2}, 4, v{t1}",
      f"v_lshrrev_b32 v{t4}, 4, v{vL}", f"v_xor_b32 v{t4}, v{t2}, v{t4}", f"v_lshl_add_u32 v{t4}, v{t4}, 4, v{t1}")
    I(f"s_lshl_b32 s{sT0}, s{sR}, 17", f"s_lshl_b32 s{sT1}, s{sW}, 15", f"s_add_u32 s{sT0}, s{sT0}, s{sT1}")
    I(f"v_add_u32 v{vQG}, s{sT0}, v{t4}", f"v_xor_b32 v{vQG+1}, 64, v{vQG}", f"v_add_u32 v{vQG+1}, 0x2000, v{vQG+1}",
      f"v_add_u32 v{vQG+2}, 0x4000, v{vQG}", f"v_add_u32 v{vQG+3}, 0x4000, v{vQG+1}")
    I(f"s_lshl_b32 s{sT0}, s{sW}, 4", f"v_lshrrev_b32 v{t5}, 2, v{vL}", f"v_add_u32 v{t5}, s{sT0}, v{t5}",
      f"v_mul_u32_u24 v{t5}, 2752, v{t5}", f"v_and_b32 v{t0}, 3, v{vL}", f"v_lshl_add_u32 v{t5}, v{t0}, 4, v{t5}",
      f"s_lshl_b32 s{sT0}, s{sUS}, 6", f"v_add_u32 v{vW1G}, s{sT0}, v{t5}")
    I(f"s_lshl_b32 s{sT0}, s{sC}, 16", f"s_lshl_b32 s{sT1}, s{sW}, 14", f"s_add_u32 s{sT0}, s{sT0}, s{sT1}",
      f"s_lshl_b32 s{sT1}, s{sX}, 7", f"s_add_u32 s{sT0}, s{sT0}, s{sT1}",
      f"v_add_u32 v{vX+1}, s{sT0}, v{t3}", f"v_add_u32 v{vX}, 0xffffe000, v{vX+1}", f"v_add_u32 v{vX+2}, 0x2000, v{vX+1}",
      f"s_lshl_b32 s{sT1}, s{sX}, 9", f"v_lshl_add_u32 v{vX+3}, v{vL}, 3, s{sT1}",
      f"s_mul_i32 s{sKVM}, s{sW}, 5120", f"s_add_u32 s{sKVM}, s{sKVM}, {L_Z}")
    I(f"v_mov_b32 v{pYG0}, v{t3}")

    tok_chunk = {}
    def chunk_items(i):
        w, q = [], []
        w += [f"s_lshl_b32 s{sOQ}, s{sKAP}, 7", f"s_mul_i32 s{sOW}, s{sKAP}, {64*2752}", f"s_add_u32 s{sKAP}, s{sKAP}, 1"]
        for u in range(3):
            w.append(f"s_add_u32 m0, s{sW3K}, {L_W1 + (i%4)*12288 + u*1024 - u*64}")
            if u == 0: w.append(f"s_and_b32 s{sKAP}, s{sKAP}, {o.G-1}")
            if u == 1 and ((i + 1) & ~(o.G-1)): w.append(f"s_or_b32 s{sKAP}, s{sKAP}, {(i+1) & ~(o.G-1)}")
            w.append(lambda u=u: g.vm(f"buffer_load_dwordx4 v{vW1G}, {sr(S_W1U if u==2 else S_W1,4)}, s{sOW} offen offset:{u*64} lds"))
        for k in range(4):
            q.append(f"s_add_u32 m0, s{sWK}, {L_Q + (i%3)*16384 + k*4096}")
            def f(k=k):
                t = g.vm(f"buffer_load_dwordx4 v{vQG+k}, {sr(S_Q,4)}, s{sOQ} offen lds")
                if k == 3: tok_chunk[i] = t
            q.append(f)
        return w, q
    def emit(items):
        for x in items:
            if callable(x): x()
            else: I(x)

    S = []
    A = lambda *x: S.extend(x)
    A(f"s_mov_b32 s{S_WS+3}, s{S_K+3}", f"s_mov_b32 s{S_WS+2}, {WS_BYTES}", f"s_mov_b32 s{S_WSU+3}, s{S_K+3}",
      f"s_mov_b32 s{S_W2+3}, s{S_K+3}", f"s_mov_b32 s{S_W2+2}, s{S_W1+2}",
      f"s_mov_b32 s{S_OUT+3}, s{S_K+3}", f"s_mov_b32 s{S_OUT+2}, s{S_K+2}",
      f"s_mov_b32 s{S_SSM+3}, s{S_K+3}", f"s_mov_b32 s{S_SSM+2}, 4096")
    A(f"v_lshlrev_b32 v{vL16}, 4, v{vL}")
    A(f"v_and_b32 v{t0}, 16, v{vL}", f"v_lshlrev_b32 v{t0}, 1, v{t0}", f"v_and_b32 v{t1}, 3, v{vL}", f"v_lshl_add_u32 v{t5}, v{t1}, 3, v{t0}",
      f"v_lshrrev_b32 v{t0}, 5, v{vL}", f"v_bfe_u32 v{t1}, v{vL}, 2, 2")
    A(f"v_lshl_add_u32 v{t2}, v{t0}, 3, v{t1}", f"v_lshl_add_u32 v{t2}, v{t2}, 6, v{t5}")
    A(f"v_bfe_u32 v{t3}, v{vL}, 3, 2", f"v_lshlrev_b32 v{t3}, 12, v{t3}", f"v_and_b32 v{t4}, 7, v{vL}", f"v_lshl_add_u32 v{t3}, v{t4}, 7, v{t3}",
      f"s_add_u32 s{sT0}, s{sWK}, {L_Q}", f"v_add_u32 v{t3}, s{sT0}, v{t3}",
      f"v_bfe_u32 v{t4}, v{vL}, 1, 3", f"v_xor_b32 v{t4}, v{t4}, v{t0}", f"v_lshl_add_u32 v{t3}, v{t4}, 4, v{t3}")
    for i in range(4):
        A(f"s_add_u32 s{sT0}, s{sW}, {i}", f"s_and_b32 s{sT0}, s{sT0}, 3", f"s_mul_i32 s{sT1}, s{sT0}, 3072", f"s_lshl_b32 s{sT0}, s{sT0}, 5",
          f"v_add_u32 v{vW1R+i}, s{sT1}, v{t2}", f"v_xor_b32 v{vQR+i}, s{sT0}, v{t3}")
    A(f"v_lshrrev_b32 v{t2}, 4, v{vL}", f"v_xor_b32 v{t2}, v{t2}, v{vL}", f"v_and_b32 v{t2}, 1, v{t2}", f"v_cmp_eq_u32 vcc, 0, v{t2}",
      f"v_mov_b32 v{t3}, 0x3f803f80", f"v_mov_b32 v{vSQ}, 0", f"v_cndmask_b32 v{vMASK}, 0, v{t3}, vcc")
    for i in range(1, 4): A(f"v_mov_b32 v{vMASK+i}, v{vMASK}", f"v_mov_b32 v{vSQ+i}, 0")
    A(f"v_lshl_add_u32 v{t2}, v{t1}, 7, v{t5}", f"v_lshl_add_u32 v{t2}, v{t0}, 6, v{t2}", f"v_add_u32 v{pKTR}, s{sKVM}, v{t2}")
    A(f"v_lshl_add_u32 v{t2}, v{t0}, 2, v{t1}", f"v_lshl_add_u32 v{t2}, v{t2}, 7, v{t5}",
      f"v_and_b32 v{t3}, 8, v{vL}", f"v_lshl_add_u32 v{t2}, v{t3}, 3, v{t2}",
      f"s_mul_i32 s{sT0}, s{sW1b}, {2048+64}", f"v_xor_b32 v{vW2R}, s{sT0}, v{t2}", f"v_xor_b32 v{vW2R+1}, 64, v{vW2R}",
      f"v_add_u32 v{vW2R+2}, 49152, v{vW2R}", f"v_add_u32 v{vW2R+3}, 49152, v{vW2R+1}",
      f"v_add_u32 v{vW2R+4}, 98304, v{vW2R}", f"v_add_u32 v{vW2R+5}, 98304, v{vW2R+1}")
    A(f"s_lshl_b32 s{sT0}, s{sW0b}, 13", f"s_lshl_b32 s{sT1}, s{sJ}, 7", f"s_add_u32 s{sT0}, s{sT0}, s{sT1}",
      f"v_and_b32 v{t3}, 16, v{vL}", f"v_lshlrev_b32 v{t3}, 2, v{t3}", f"v_xor_b32 v{t2}, v{pYG0}, v{t3}", f"v_add_u32 v{vW2G}, s{sT0}, v{t2}")
    for k in range(1, 4): A(f"v_add_u32 v{vW2G+k}, {16384*k}, v{vW2G}")
    A(f"s_and_b32 s{sT1}, s{sR}, 3", f"s_mul_i32 s{sT1}, s{sT1}, 3", f"s_add_u32 s{sT0}, s{sJ}, s{sT1}",
      f"s_sub_u32 s{sT1}, s{sT0}, 10", f"s_min_u32 s{sT0}, s{sT0}, s{sT1}",
      f"s_mul_i32 s{sT1}, s{sW1b}, 43",
      f"s_lshl_b32 s{sW2S}, s{sT1}, 14", f"s_add_u32 s{sW2E}, s{sW2S}, {40*16384}",
      f"s_lshl_b32 s{sT2}, s{sT0}, 16", f"s_add_u32 s{sW2O}, s{sW2S}, s{sT2}",
      f"s_lshl_b32 s{sT2}, s{sR}, 2", f"s_lshl_b32 s{sT3}, s{sE}, 1", f"s_add_u32 s{sT3}, s{sT2}, s{sT3}", f"s_add_u32 s{sS32}, s{sT3}, s{sW0b}",
      f"s_mul_i32 s{sT3}, s{sS32}, 86", f"s_add_u32 s{sT3}, s{sT3}, s{sT1}", f"s_lshl_b32 s{sHS}, s{sT3}, 10",
      f"s_add_u32 s{sHE}, s{sHS}, {40*1024}", f"s_lshl_b32 s{sT3}, s{sT0}, 12", f"s_add_u32 s{sHO}, s{sHS}, s{sT3}",
      f"s_add_u32 s{sT2}, s{sT2}, s{sW}",
      f"s_mul_i32 s{sT3}, s{sT2}, 86", f"s_lshl_b32 s{sT0}, s{sUS}, 1", f"s_add_u32 s{sT3}, s{sT3}, s{sT0}", f"s_lshl_b32 s{sHST}, s{sT3}, 10", f"s_add_u32 s{sHST2}, s{sHST}, 4096",
      f"s_lshl_b32 s{sT2}, s{sT2}, 4", f"s_lshl_b32 s{sT3}, s{sE}, 3", f"s_add_u32 s{sT2}, s{sT2}, s{sT3}", f"s_add_u32 s{sT2}, s{sT2}, s{sJ}", f"s_lshl_b32 s{sT2}, s{sT2}, 7", f"s_add_u32 s{sFB}, s{sT2}, {FB_OFF}",
      f"s_lshl_b32 s{sT2}, s{sS32}, 11", f"s_add_u32 s{sPB}, s{sT2}, {FB_OFF}")
    A(f"s_lshl_b32 s{sT0}, s{sX}, 6", f"s_lshl_b32 s{sT1}, s{sC}, 1", f"s_add_u32 s{sT1}, s{sT1}, s{sW1b}", f"s_add_u32 s{sCH}, s{sT0}, s{sT1}",
      f"s_lshl_b32 s{sT2}, s{sX}, 1", f"s_add_u32 s{sT2}, s{sT2}, s{sW0b}", f"s_lshl_b32 s{sT2}, s{sT2}, 6", f"s_add_u32 s{sT2}, s{sT2}, s{sT1}", f"s_lshl_b32 s{sT2}, s{sT2}, 7", f"s_add_u32 s{sFC}, s{sT2}, {FC_OFF}",
      f"s_lshl_b32 s{sT0}, s{sCH}, 12", f"s_add_u32 s{S_SSM}, s{S_SSM}, s{sT0}", f"s_addc_u32 s{S_SSM+1}, s{S_SSM+1}, 0",
      f"s_lshl_b32 s{sT1}, s{sW0b}, 11", f"s_add_u32 s{sT0}, s{sT0}, s{sT1}", f"s_add_u32 s{sKVL}, s{sT0}, {KVT_OFF}", f"s_add_u32 s{sYS}, s{sT0}, {YT_OFF}",
      f"v_add_u32 v{pSSM}, s{sT1}, v{vL16}",
      f"s_mul_i32 s{sT2}, s{sW1b}, {4*CSTR}", f"s_add_u32 s{sT2}, s{sT2}, {L_SSM}",
      f"s_mul_i32 s{sT3}, s{sW1b}, {USTR}", f"s_add_u32 s{sT3}, s{sT3}, {L_U}",
      f"v_add_u32 v{pCW}, s{sT2}, v{pSSM}", f"v_add_u32 v{pUW}, s{sT3}, v{pSSM}",
      f"v_lshrrev_b32 v{t2}, 1, v{vL}", f"v_lshlrev_b32 v{vF1}, 7, v{t2}", f"v_mul_u32_u24 v{t2}, {CSTR}, v{t2}", f"v_and_b32 v{t3}, 1, v{vL}", f"v_lshl_add_u32 v{t2}, v{t3}, 4, v{t2}", f"v_add_u32 v{t2}, s{sT2}, v{t2}",
      f"s_add_u32 s{sT0}, s{sT3}, {4096-128}", f"v_add_u32 v{t3}, s{sT0}, v{vL16}", f"v_cmp_gt_u32 vcc, 8, v{vL}", f"v_lshrrev_b32 v{vF2}, 2, v{vL}", f"v_lshlrev_b32 v{vF2}, 7, v{vF2}", f"v_cndmask_b32 v{pZW}, v{t3}, v{t2}, vcc",
      f"s_lshl_b32 s{sT0}, s{sW0b}, 8", f"v_and_b32 v{t2}, 15, v{vL}", f"v_and_b32 v{t3}, 48, v{vL}",
      f"s_add_u32 s{sT1}, s{sT3}, s{sT0}", f"s_add_u32 s{sT1}, s{sT1}, 480", f"v_add_u32 v{t4}, s{sT1}, v{t3}", f"v_lshlrev_b32 v{pYS}, 5, v{t2}", f"v_sub_u32 v{pB}, v{t4}, v{pYS}",
      f"v_sub_u32 v{t4}, 3, v{t2}", f"v_and_b32 v{t4}, 3, v{t4}", f"v_mul_u32_u24 v{t4}, {CSTR}, v{t4}", f"v_lshrrev_b32 v{t2}, 2, v{t2}", f"v_lshl_add_u32 v{t4}, v{t2}, 3, v{t4}",
      f"s_add_u32 s{sT1}, s{sT2}, s{sT0}", f"s_add_u32 s{sT1}, s{sT1}, 8", f"v_add3_u32 v{pA}, v{t4}, v{t3}, s{sT1}",
      f"s_lshl_b32 s{sT0}, s{sW0b}, 11", f"s_sub_u32 s{sT0}, s{sT3}, s{sT0}", f"s_add_u32 s{sT0}, s{sT0}, {4088-1536}", f"v_lshrrev_b32 v{t3}, 1, v{t3}", f"v_add_u32 v{t3}, v{t3}, v{pYS}", f"v_sub_u32 v{pUR}, s{sT0}, v{t3}",
      f"v_and_b32 v{t3}, 16, v{vL}", f"v_lshl_add_u32 v{pYS}, v{t3}, 5, v{pYS}", f"v_lshl_add_u32 v{pYS}, v{t0}, 4, v{pYS}",
      f"s_lshl_b32 s{sT0}, s{sW}, 12", f"s_add_u32 s{sT0}, s{sT0}, {L_EX}", f"v_add_u32 v{pEXW}, s{sT0}, v{vL16}", f"v_xor_b32 v{pEXR}, 4096, v{pEXW}")
    A(f"s_lshl_b32 s{sT0}, s{sW}, 5", f"s_sub_u32 s{sT0}, {L_U+96}, s{sT0}", f"v_mul_u32_u24 v{t2}, 144, v{vL}", f"v_add_u32 v{pKSW}, s{sT0}, v{t2}",
      f"s_lshl_b32 s{sT0}, s{sW}, 4", f"v_lshrrev_b32 v{t2}, 3, v{vL}", f"v_add_u32 v{t3}, s{sT0}, v{t2}", f"v_and_b32 v{t4}, 7, v{vL}", f"v_lshlrev_b32 v{t4}, 4, v{t4}",
      f"v_mul_u32_u24 v{pKSR}, 144, v{t3}", f"v_add_u32 v{pKSR}, v{pKSR}, v{t4}", f"v_add_u32 v{pKSR}, {L_U}, v{pKSR}",
      f"v_lshl_add_u32 v{pKG0}, v{t3}, 12, v{t4}", f"v_add_u32 v{pKG1}, 0x8000, v{pKG0}",
      f"s_lshl_b32 s{sT0}, s{sX}, 18", f"s_lshl_b32 s{sT1}, s{sC}, 7", f"s_sub_u32 s{sT0}, s{sT0}, s{sT1}", f"s_add_u32 s{sKVS}, s{sT0}, {KVT_OFF+3968}",
      f"v_mul_u32_u24 v{pFR}, {PSTR}, v{t3}", f"v_lshl_add_u32 v{pFR}, v{t4}, 1, v{pFR}", f"v_add_u32 v{pFR}, {L_PART}, v{pFR}",
      f"s_lshl_b32 s{sT0}, s{sX}, 2", f"s_add_u32 s{sT1}, s{sT0}, s{sW}", f"s_lshl_b32 s{sT1}, s{sT1}, 5", f"s_add_u32 s{sT1}, s{sT1}, s{sC}", f"s_lshl_b32 s{sT1}, s{sT1}, 7", f"s_add_u32 s{sFA}, s{sT1}, {FA_OFF}",
      f"s_lshr_b32 s{sT1}, s{sC}, 3", f"s_add_u32 s{sT0}, s{sT0}, s{sT1}", f"s_lshl_b32 s{sT0}, s{sT0}, 12", f"s_add_u32 s{sPA}, s{sT0}, {FA_OFF}",
      f"s_lshl_b32 s{sT0}, s{sJ}, 1", f"s_lshr_b32 s{sT1}, s{sR}, 3", f"s_add_u32 s{sT0}, s{sT0}, s{sT1}", f"s_lshl_b32 s{sT0}, s{sT0}, 2", f"s_add_u32 s{sT0}, s{sT0}, s{sW}", f"s_lshl_b32 s{sT0}, s{sT0}, 11", f"s_add_u32 s{sPC}, s{sT0}, {FC_OFF}",
      f"s_lshl_b32 s{sT0}, s{sJ}, 18", f"s_lshl_b32 s{sT1}, s{sR}, 8", f"s_add_u32 s{sT0}, s{sT0}, s{sT1}", f"s_lshl_b32 s{sT1}, s{sE}, 7", f"s_add_u32 s{sT0}, s{sT0}, s{sT1}", f"s_add_u32 s{sYL}, s{sT0}, {YT_OFF}",
      f"s_lshl_b32 s{sT0}, s{sR}, 17", f"s_lshl_b32 s{sT1}, s{sE}, 16", f"s_add_u32 s{sT0}, s{sT0}, s{sT1}", f"s_lshl_b32 s{sT1}, s{sW}, 14", f"s_add_u32 s{sT0}, s{sT0}, s{sT1}",
      f"s_lshl_b32 s{sT1}, s{sJ}, 7", f"s_add_u32 s{sTILE}, s{sT0}, s{sT1}")
    A(f"s_lshl_b32 s{sT0}, s{sE}, 9", f"s_add_u32 s{sT0}, s{sT0}, {L_STAT}", f"v_lshl_add_u32 v{pSTR}, v{t3}, 3, s{sT0}",
      f"s_lshl_b32 s{sT0}, s{sW}, 5", f"v_xor_b32 v{t5}, s{sT0}, v{t4}", f"v_lshl_add_u32 v{pYW0}, v{t3}, 7, v{t5}", f"v_add_u32 v{pYW0}, {L_YI}, v{pYW0}", f"v_xor_b32 v{pYW1}, 16, v{pYW0}",
      f"v_lshl_add_u32 v{t5}, v{t4}, 6, v{t5}", f"v_lshl_add_u32 v{t5}, v{t2}, 1, v{t5}", f"v_add_u32 v{pYR0}, {L_YI}, v{t5}", f"v_xor_b32 v{pYR1}, 16, v{pYR0}",
      f"v_add_u32 v{pYG1}, 0x2000, v{pYG0}")
    A(f"v_and_b32 v{t2}, 31, v{vL}", f"v_lshlrev_b32 v{t3}, 4, v{t2}", f"v_add_u32 v{pCSR}, {L_CS}, v{t3}", f"s_lshl_b32 s{sT0}, s{sW}, 2", f"v_add_u32 v{pCSW}, s{sT0}, v{pCSR}",
      f"s_lshl_b32 s{sT0}, s{sW}, 8", f"s_add_u32 s{sT0}, s{sT0}, {L_STAT}", f"v_lshl_add_u32 v{pSTW}, v{t2}, 3, s{sT0}",
      f"s_mul_i32 s{sT0}, s{sW}, {32*PSTR}", f"s_add_u32 s{sT0}, s{sT0}, {L_PART}", f"v_mul_u32_u24 v{t3}, {PSTR}, v{t2}", f"v_lshl_add_u32 v{t3}, v{t0}, 4, v{t3}",
      f"s_lshl_b32 s{sT1}, s{sW1b}, 7", f"s_add_u32 s{sT2}, s{sT0}, s{sT1}", f"v_add_u32 v{pPW}, s{sT2}, v{t3}",
      f"s_xor_b32 s{sT1}, s{sT1}, 128", f"s_add_u32 s{sT2}, s{sT0}, s{sT1}", f"v_add_u32 v{pPW1}, s{sT2}, v{t3}")
    A(f"s_lshr_b32 s{sT0}, s{sCH}, 1", f"s_lshl_b32 s{sT0}, s{sT0}, 2", f"v_mov_b32 v{pD}, s{sT0}")

    NPRE = o.npre
    pre_part = [x for x in S[:NPRE]]
    assert not any(f"s{S_SSM}," in x for x in pre_part)
    emit(pre_part)
    I("s_waitcnt lgkmcnt(0)")
    stamp("kernarg")
    if o.probe:
        I("s_load_dwordx2 s[94:95], s[0:1], 48", f"s_lshl_b32 s{sT0}, s2, 13", f"v_lshl_add_u32 v{vS}, v0, 2, s{sT0}", "s_waitcnt lgkmcnt(0)")
        for r in range(o.probe):
            I(f"global_load_dword v{vS+1}, v{vS}, s[94:95]", f"v_add_u32 v{vS}, 1024, v{vS}", "s_waitcnt vmcnt(0)")
        stamp("probe")
    tok = {}
    kvl = []
    for i in range(3): kvl.append([f"s_add_u32 m0, s{sKVM}, {i*1024}", lambda i=i: g.vm(f"buffer_load_dwordx4 v{vX+i}, {sr(S_K,4)}, 0 offen lds")])
    for i in range(2): kvl.append([f"s_add_u32 m0, s{sKVM}, {(3+i)*1024}", lambda i=i: g.vm(f"buffer_load_dwordx4 v{vX+1+i}, {sr(S_V,4)}, 0 offen lds")])
    def kvw(): tok["kv"] = g.vm(f"global_load_dwordx2 {vr(vWT,2)}, v{vX+3}, {sr(sPSH,2)}")
    kvl.append([kvw])
    def kv_items(pos):
        out = []
        for p, it in zip(o.kv_sched, kvl):
            if p == pos: out += it
        return out
    emit(kv_items(-2))
    a, b = chunk_items(0); emit(a + b)
    I(f"s_add_u32 s6, s{S_WS}, {E_OFF}", f"s_addc_u32 s7, s{S_WS+1}, 0", f"s_load_dword s{sNON}, s[6:7], 0")
    emit(kv_items(-1))
    c1a, c1b = chunk_items(1)
    if o.c1_early: emit(c1a); c1a = []
    emit(S[NPRE:])
    if o.touch:
        I(f"v_lshlrev_b32 v{t0}, 21, v{vL}", "s_mov_b64 exec, 63")
        g.vm(f"buffer_load_dword v{vFL}, v{t0}, {sr(S_WS,4)}, 0 offen sc1")
        I("s_mov_b64 exec, 1")
        g.vm(f"buffer_load_dword v{vFL}, off, {sr(S_OUT,4)}, s{sTILE}")
        g.vm(f"buffer_load_dword v{vFL}, off, {sr(S_W2,4)}, s{sW2O}")
        I("s_mov_b64 exec, -1")
    I("s_waitcnt lgkmcnt(0)")
    I(f"s_mul_i32 s{sNON}, s{sNON}, 1664525", f"s_add_u32 s{sNON}, s{sNON}, 1013904223", f"v_mov_b32 v{vNON}, s{sNON}")
    stamp("setup")

    def flag_items(sreg):
        return ["s_mov_b64 exec, 1", lambda: g.vm(f"buffer_store_dword v{vNON}, off, {sr(S_WS,4)}, s{sreg} sc1"), "s_mov_b64 exec, -1"]
    def flag_store(sreg): emit(flag_items(sreg))
    def poll_issue(sreg, va):
        return g.vm(f"buffer_load_dword v{vFL}, v{va}, {sr(S_WS,4)}, s{sreg} offen sc1")
    def poll_check(tok, sreg, va):
        ok, lp, sl = g.label("LOK"), g.label("LPOLL"), g.label("LSLOW")
        g.wait(vm=tok)
        I(f"v_cmp_ne_u32 vcc, s{sNON}, v{vFL}", "s_nop 1", f"s_cbranch_vccnz {sl}", f"{ok}:")
        cold_code.extend([f"{sl}:", f"s_mov_b32 s{sSPIN}, 400000",
          f"{lp}:", f"buffer_load_dword v{vFL}, v{va}, {sr(S_WS,4)}, s{sreg} offen sc1", f"s_sub_u32 s{sSPIN}, s{sSPIN}, 1", "s_waitcnt vmcnt(0)",
          f"s_cbranch_scc1 {ok}", f"v_cmp_ne_u32 vcc, s{sNON}, v{vFL}", "s_nop 1", f"s_cbranch_vccnz {lp}", f"s_branch {ok}"])

    order29 = [35, 36, 37, 38, 39, 0, 1, 2, 20, 21, 22, 23, 3, 4, 5, 12, 13, 14, 15, 6, 7, 8, 16, 17, 18, 19, 9, 10, 11]
    NHELD = 14
    slot_unit = order29 + order29[:NHELD]
    aW2, aH, NHR = 0, 8 * NHELD, o.nhr
    assert aH + 4 * NHR <= 256
    w2_next = [0]; tok_w2 = {}
    def w2_items(cnt, avail=99):
        out = []
        for _ in range(cnt):
            n = w2_next[0]
            assert n < avail, (n, avail)
            w2_next[0] += 1
            out.append(f"s_add_u32 m0, s{sWK}, {slot_unit[n]*4096}")
            if n == 40: out.append(f"s_mov_b32 s{sW2O}, s{sW2E}")
            def f(n=n): tok_w2[n] = g.vm(f"buffer_load_dwordx4 v{vW2G+n%4}, {sr(S_W2,4)}, s{sW2O} offen lds")
            out.append(f)
            if n % 4 == 3 and n < 39:
                out += [f"s_add_u32 s{sW2O}, s{sW2O}, 65536", f"s_cmp_ge_u32 s{sW2O}, s{sW2E}", f"s_cselect_b32 s{sW2O}, s{sW2S}, s{sW2O}"]
        return out
    trd = {}
    def w2_read_items(n, dst, kind):
        u = slot_unit[n]; win = min(u // 12, 2); base = u - 12 * win; out = []
        for tl in range(2):
            for hh in range(2):
                def f(tl=tl, hh=hh): trd[(n, tl)] = g.ds(f"ds_read_b64_tr_b16 {vr(dst+4*tl+2*hh,2,kind)}, v{vW2R+2*win+tl} offset:{base*4096+hh*1024}")
                out.append(f)
        return out
    def held_items(n): return w2_read_items(n, aW2 + 8 * n, "a")
    def glue(items):
        out = []; i = 0
        while i < len(items):
            x = items[i]
            if isinstance(x, str) and x.startswith("s_cmp"):
                y = items[i + 1]; out.append(lambda x=x, y=y: I(x, y)); i += 2
            elif isinstance(x, str) and x.startswith("s_mov_b64 exec, 1"):
                y, z = items[i + 1], items[i + 2]; out.append(lambda x=x, y=y, z=z: (I(x), y(), I(z))); i += 3
            else:
                out.append(x); i += 1
        return out

    tw = {}
    def w1_read_items(n):
        i, j = divmod(n, 4); b = aWF + 12 * (n % 3); out = []
        for u in range(3):
            for hh in range(2):
                def f(u=u, hh=hh): tw[(n, u)] = g.ds(f"ds_read_b64_tr_b16 {ar(b+4*u+2*hh,2)}, v{vW1R+j} offset:{(i%4)*12288+u*1024+hh*256}")
                out.append(f)
        return out
    tq = {}
    def q_read_items(i):
        out = []
        for k in range(4):
            def f(k=k): tq[(i, k)] = g.ds(f"ds_read_b128 {vr(vQF+16*(i%2)+4*k,4)}, v{vQR+k} offset:{(i%3)*16384}")
            out.append(f)
        return out
    rq, dq, fq = Q(), Q(), Q()
    def step(n, rmax=2, dmax=2):
        i, j = divmod(n, 4); b = aWF + 12 * (n % 3); q = vQF + 16 * (i % 2) + 4 * j
        for u in range(3):
            g.wait(ds=max(tw[(n, u)], tq[(i, j)]))
            c = "0" if n == 0 else vr(vACC+16*u, 16)
            I(f"v_mfma_f32_32x32x16_bf16 {vr(vACC+16*u,16)}, {ar(b+4*u,4)}, {vr(q,4)}, {c}")
            dq.pop(1); gap(4, (rq, rmax), (dq, dmax - 1), (fq, 4))
        c = "0" if n == 0 else vr(vSUM, 4)
        if not (i == 7 and j > 0):
            for jj in (range(4) if i == 7 else [j]):
                qq = vQF + 16 * (i % 2) + 4 * jj
                I(f"v_mfma_f32_16x16x32_bf16 {vr(vSUM,4)}, {vr(vMASK,4)}, {vr(qq,4)}, {c}")
                gap(2, (rq, 1), (dq, 1), (fq, 2))
        if j == 0:
            for u in range(3):
                c = "0" if n == 0 else vr(vCS+4*u, 4)
                I(f"v_mfma_f32_16x16x32_bf16 {vr(vCS+4*u,4)}, {vr(vMASK,4)}, {ar(b+4*u,4)}, {c}")
                gap(2, (rq, 1), (dq, 1), (fq, 2))
    def dot_batch(i):
        for k in range(16):
            q = vQF + 16 * (i % 2) + k
            I(f"v_dot2_f32_bf16 v{vSQ+k%4}, v{q}, v{q}, v{vSQ+k%4}")
    vSS = vS
    vCP = vS + 12
    vPK = vX + 10
    KB = o.kv_blk
    def ssm_prep_items():
        out = []
        for k in range(2):
            d = vSS + 6 * k; c = vCP + 12 * k
            out.append(lambda d=d, k=k: g.ds(f"ds_write_b128 v{pCW}, {vr(d+2,4)} offset:{32+1024*k}"))
            out += [f"v_alignbit_b32 v{c+j}, v{d+2+j}, v{d+1+j}, 16" for j in range(4)]
            out.append(lambda c=c, k=k: g.ds(f"ds_write_b128 v{pCW}, {vr(c,4)} offset:{CSTR+32+1024*k}"))
            out += [f"v_mov_b32 v{c+4+j}, v{d+1+j}" for j in range(4)]
            out.append(lambda c=c, k=k: g.ds(f"ds_write_b128 v{pCW}, {vr(c+4,4)} offset:{2*CSTR+32+1024*k}"))
            out += [f"v_alignbit_b32 v{c+8+j}, v{d+1+j}, v{d+j}, 16" for j in range(4)]
            out.append(lambda c=c, k=k: g.ds(f"ds_write_b128 v{pCW}, {vr(c+8,4)} offset:{3*CSTR+32+1024*k}"))
        out += [f"s_and_b32 s{sT0}, s{sCH}, 1", f"s_lshl_b32 s{sT0}, s{sT0}, 4", f"v_lshrrev_b32 v{pD}, s{sT0}, v{pD}", f"v_lshlrev_b32 v{pD}, 16, v{pD}"]
        return out
    def kv_block(mid=()):
        vK, vV, vO, vKS = vX, vX+10, vX+18, vX+28
        vWA, vWB = t0, t1
        g.wait(vm=tok["kv"])
        stamp("kv_landed")
        emit(mid)
        tk = [g.ds(f"ds_read_b64_tr_b16 {vr(vK+2*j,2)}, v{pKTR} offset:{512+512*j}") for j in range(5)]
        tv = [g.ds(f"ds_read_b64_tr_b16 {vr(vV+2*j,2)}, v{pKTR} offset:{3072+512*j}") for j in range(4)]
        I(f"v_alignbit_b32 v{vWA}, v{vWT}, v{vWT}, 16", f"v_alignbit_b32 v{vWB}, v{vWT+1}, v{vWT+1}, 16")
        g.wait(ds=tk[4])
        for j in range(9): I(f"v_alignbit_b32 v{vO+j}, v{vK+j+1}, v{vK+j}, 16")
        for a in range(8):
            I(f"v_dot2_f32_bf16 v{vKS+2*a}, v{vO+a}, v{vWB}, 0", f"v_dot2_f32_bf16 v{vKS+2*a+1}, v{vK+a+1}, v{vWB}, 0")
        for a in range(8):
            I(f"v_dot2_f32_bf16 v{vKS+2*a}, v{vO+a+1}, v{vWA}, v{vKS+2*a}", f"v_dot2_f32_bf16 v{vKS+2*a+1}, v{vK+a+2}, v{vWA}, v{vKS+2*a+1}")
        g.wait(ds=tv[3])
        vf = [vK + 2*a for a in range(4)] + [vO + 2*a for a in range(4)]
        for a in range(8):
            I(f"v_lshlrev_b32 v{vf[a]}, 16, v{vV+a}", f"v_and_b32 v{vf[a]+1}, 0xffff0000, v{vV+a}")
        for a in range(8):
            I(f"v_pk_mul_f32 {vr(vKS+2*a,2)}, {vr(vKS+2*a,2)}, {vr(vf[a],2)}")
        for j in range(8):
            I(f"v_cvt_pk_bf16_f32 v{vPK+j}, v{vKS+15-2*j}, v{vKS+14-2*j}")
        g.ds(f"ds_write_b128 v{pKSW}, {vr(vPK,4)}"); g.ds(f"ds_write_b128 v{pKSW}, {vr(vPK+4,4)} offset:16")
        stamp("kv_done")
    flagA_done = False
    if KB == -1:
        kv_block(c1a + c1b); c1a, c1b = [], []
    for i in range(9):
        if i <= 7: g.wait(vm=tok_chunk[i], ds=g.nds-1)
        else: g.wait(ds=g.nds-1)
        I("s_barrier")
        stamp(f"it{i}")
        pre, post = kv_items(i), []
        if i == 0:
            a, b = chunk_items(2); pre += c1a + c1b + a + b
        if i + 3 <= 7:
            a, b = chunk_items(i + 3); pre += a; post += b
            if i > KB + 1 and o.w2_early[i]: post += w2_items(o.w2_early[i], 5)
        else:
            cnt = o.w2_pace[i - 5]; av = 7 * (i - 5) + 8
            k = max(0, min(cnt, av - w2_next[0], (cnt + 1) // 2))
            pre += w2_items(k, av)
            if i <= 7: post += w2_items(cnt - k, av + 4)
            else: pre += w2_items(cnt - k, av)
        if i == KB + 1:
            def kvrd0(): g.ds(f"ds_read_b128 {vr(vPK,4)}, v{pKSR}")
            def kvrd1(): tok["kvr"] = g.ds(f"ds_read_b128 {vr(vPK+4,4)}, v{pKSR} offset:{8*144}")
            rq.add(kvrd0, kvrd1)
            def kvst0(): g.vm(f"buffer_store_dwordx4 {vr(vPK,4)}, v{pKG0}, {sr(S_WS,4)}, s{sKVS} offen sc1")
            def kvst1(): tok["kvst"] = g.vm(f"buffer_store_dwordx4 {vr(vPK+4,4)}, v{pKG1}, {sr(S_WS,4)}, s{sKVS} offen sc1")
            post = [kvst0, kvst1] + post
        if not flagA_done and "kvst" in tok and (g.vm_done >= tok["kvst"] or i == KB + 1 + o.flaga_lag or i == 8):
            g.wait(vm=tok["kvst"]); pre = flag_items(sFA) + pre; flagA_done = True
        if i == o.ssm_at:
            def s0(): g.vm(f"buffer_load_dwordx2 {vr(vSS,2)}, v{vCP}, {sr(S_SSM,4)}, 0 offen")
            def s1(): g.vm(f"buffer_load_dwordx4 {vr(vSS+2,4)}, v{pSSM}, {sr(S_SSM,4)}, 0 offen")
            def s2(): g.vm(f"buffer_load_dwordx2 {vr(vSS+6,2)}, v{pSSM}, {sr(S_SSM,4)}, 0 offen offset:1016")
            def s3(): g.vm(f"buffer_load_dwordx4 {vr(vSS+8,4)}, v{pSSM}, {sr(S_SSM,4)}, 0 offen offset:1024")
            def s4(): tok["ssm"] = g.vm(f"global_load_dword v{pD}, v{pD}, {sr(sPD,2)}")
            pre = [f"v_add_u32 v{vCP}, -8, v{pSSM}", s0, s1, s2, s3, s4] + pre
        if o.ssm_shadow and "ssm" in tok and "ssmprep" not in tok and g.vm_done >= tok["ssm"] and i <= 7:
            tok["ssmprep"] = 1; fq.add(*ssm_prep_items())
        if i == o.polla_at:
            def pa(): tok["pollA"] = poll_issue(sPA, vF1)
            pre = [pa] + pre
        if i <= 7:
            rq.add(*q_read_items(i)); rq.add(*w1_read_items(4 * i))
        else:
            tcs = {}
            for u in range(3):
                def f(u=u): tcs[u] = g.ds(f"ds_read_b128 {vr(vCS+4*u,4)}, v{pCSR} offset:{u*512}")
                rq.add(f)
        dq.add(*glue(pre))
        if i > 0:
            step(4 * i - 2, rmax=3); rq.flush()
            if i <= 7: rq.add(*w1_read_items(4 * i + 1))
            step(4 * i - 1); rq.flush()
        else:
            rq.flush(); rq.add(*w1_read_items(1)); rq.flush(); dq.pop(8)
        if i == 8: break
        rq.add(*w1_read_items(4 * i + 2))
        g.wait(ds=tq[(i, 3)])
        dq.add(*glue(post))
        step(4 * i); rq.flush()
        rq.add(*w1_read_items(4 * i + 3))
        if i == 7:
            fq.flush()
            fq.add(f"v_and_b32 v{t0}, 16, v{vL}", f"v_cmp_ne_u32 vcc, 0, v{t0}")
            for u in range(3):
                fq.add(f"v_cndmask_b32 v{t3}, v{vCS+4*u}, v{vCS+4*u+1}, vcc", f"v_cvt_pk_bf16_f32 v{t4}, v{t3}, v{t3}", f"v_lshlrev_b32 v{t4}, 16, v{t4}",
                       f"v_sub_f32 v{t3}, v{t3}, v{t4}", f"v_cvt_pk_bf16_f32 v{vCS+4*u+2}, v{t4}, v{t3}",
                       lambda u=u: g.ds(f"ds_write_b32 v{pCSW}, v{vCS+4*u+2} offset:{u*512}"))
        step(4 * i + 1); rq.flush()
        if i == 7: fq.flush()
        dot_batch(i)
        dq.flush()
        if i == KB: kv_block()
        if i == 7:
            I(f"v_cndmask_b32 v{t0}, v{vSUM}, v{vSUM+1}, vcc",
              f"v_add_f32 v{vSQ}, v{vSQ}, v{vSQ+1}", f"v_add_f32 v{vSQ+2}, v{vSQ+2}, v{vSQ+3}", f"v_mul_f32 v{t0}, 0x3b000000, v{t0}", f"v_add_f32 v{vSQ}, v{vSQ}, v{vSQ+2}", f"v_mov_b32 v{vSQ+1}, v{vSQ}")
            fq.add(f"v_permlane32_swap_b32 v{vSQ}, v{vSQ+1}", f"v_add_f32 v{vSQ}, v{vSQ}, v{vSQ+1}", f"v_mul_f32 v{vSQ}, 0x3b000000, v{vSQ}",
              f"v_fma_f32 v{vSQ}, -v{t0}, v{t0}, v{vSQ}", f"v_max_f32 v{vSQ}, 0, v{vSQ}",
              f"v_cvt_pk_bf16_f32 v{t3}, v{t0}, v{vSQ}",
              f"v_lshlrev_b32 v{t0}, 16, v{t3}", f"v_and_b32 v{t4}, 0xffff0000, v{t3}",
              f"v_cvt_pk_bf16_f32 v{t3}, -v{t0}, -v{t0}", f"v_cmp_gt_u32 vcc, 32, v{vL}",
              f"v_add_f32 v{t4}, 0x3727c5ac, v{t4}", f"v_cvt_pk_bf16_f32 v{t4}, v{t4}, v{t4}",
              f"v_cndmask_b32 v{vSUM}, 0, v{t3}, vcc", f"v_mov_b32 v{vSUM+1}, v{vSUM}", f"v_mov_b32 v{vSUM+2}, v{vSUM}", f"v_mov_b32 v{vSUM+3}, v{vSUM}",
              "MARK",
              f"v_lshlrev_b32 v{t4}, 16, v{t4}", f"v_sqrt_f32 v{t4}, v{t4}", f"v_cvt_pk_bf16_f32 v{t4}, v{t4}, v{t4}", f"v_lshlrev_b32 v{vSD}, 16, v{t4}", f"v_mov_b32 v{vSD+1}, v{vSD}",
              f"v_rcp_f32 v{t1}, v{vSD}", f"v_mul_f32 v{vC1}, 0xbfb8aa3b, v{t1}", f"v_mov_b32 v{vC1+1}, v{vC1}",
              lambda: g.ds(f"ds_write_b64 v{pSTW}, {vr(t0,2)}"))
    while "MARK" in fq.q: fq.pop(1)
    g.wait(ds=tcs[2])
    for u in range(3):
        I(f"v_mfma_f32_32x32x16_bf16 {vr(vACC+16*u,16)}, {vr(vCS+4*u,4)}, {vr(vSUM,4)}, {vr(vACC+16*u,16)}")
        gap(5, (fq, 5), (dq, 5))
    dq.flush(); fq.flush()
    g.L = [x for x in g.L if x != "MARK"]
    vKT = vQF
    def kvt_load():
        poll_check(tok["pollA"], sPA, vF1)
        g.vm(f"buffer_load_dwordx4 {vr(vKT,4)}, v{vL16}, {sr(S_WS,4)}, s{sKVL} offen sc1")
        tok["kvt"] = g.vm(f"buffer_load_dwordx4 {vr(vKT+4,4)}, v{vL16}, {sr(S_WS,4)}, s{sKVL} offen offset:1024 sc1")
        stamp("pollA")
    vE = vQF + 16
    vHP = vX
    for u in range(3):
        if o.polla_at == 9 + u: tok["pollA"] = poll_issue(sPA, vF1)
        if o.kvt_at == u: kvt_load()
        a = vACC + 16 * u; p = vHP + 8 * u
        dq.add(*glue(w2_items(o.w2_pace[4 + u], 29)))
        for k in range(8): I(f"v_pk_mul_f32 {vr(vE+2*k,2)}, {vr(a+2*k,2)}, {vr(vC1,2)}")
        for k in range(16):
            I(f"v_exp_f32 v{vE+k}, v{vE+k}")
            if k % 4 == 1: dq.pop(1)
        for k in range(8): I(f"v_pk_fma_f32 {vr(vE+2*k,2)}, {vr(vE+2*k,2)}, {vr(vSD,2)}, {vr(vSD,2)}")
        for k in range(16):
            I(f"v_rcp_f32 v{vE+k}, v{vE+k}")
            if k % 4 == 1: dq.pop(1)
        dq.flush()
        for k in range(8): I(f"v_pk_mul_f32 {vr(vE+2*k,2)}, {vr(vE+2*k,2)}, {vr(a+2*k,2)}")
        for kk in range(2):
            for k in range(4): I(f"v_cvt_pk_bf16_f32 v{p+4*kk+k}, v{vE+8*kk+2*k}, v{vE+8*kk+2*k+1}")
            if u < 2: tok["hst"] = g.vm(f"buffer_store_dwordx4 {vr(p+4*kk,4)}, v{vL16}, {sr(S_WS,4)}, s{sHST} offen offset:{(2*u+kk)*1024} sc1")
            else: tok["hst"] = g.vm(f"buffer_store_dwordx4 {vr(p+4*kk,4)}, v{vL16}, {sr(S_WSU,4)}, s{sHST2} offen offset:{kk*1024} sc1")
    stamp("silu")
    if o.kvt_at == 3: kvt_load()
    dq.add(*glue(w2_items(29 - w2_next[0], 29)))
    if "ssmprep" not in tok:
        g.wait(vm=tok["ssm"])
        for k, x in enumerate(ssm_prep_items()):
            emit([x])
            if k % 3 == 2: dq.pop(1)
    dq.flush()
    for j in range(4): I(f"v_mov_b32 v{vACC+j}, 0")
    I("s_mov_b32 exec_hi, 63")
    g.ds(f"ds_write_b128 v{pZW}, {vr(vACC,4)}")
    I("s_mov_b32 exec_hi, -1")
    g.wait(vm=tok["kvt"])
    flagB_done = False
    def try_flagB(force=False):
        nonlocal flagB_done
        if not flagB_done and (force or g.vm_done >= tok["hst"]):
            g.wait(vm=tok["hst"]); flag_store(sFB); flagB_done = True; stamp("flagB")
    try_flagB()
    g.ds(f"ds_write_b128 v{pUW}, {vr(vKT,4)}")
    g.ds(f"ds_write_b128 v{pUW}, {vr(vKT+4,4)} offset:1024")
    HB = o.held_split
    g.wait(vm=tok_w2[HB-1], ds=g.nds-1); I("s_barrier")
    stamp("Bb")
    vY = vACC
    vFR = 96
    tcv = {}
    def conv_read_items(st):
        b = vFR + 64 * (st % 2); out = []
        def fa(a, hh): tcv[(st, "a", a)] = g.ds(f"ds_read_b64 {vr(b+4*a+2*hh,2)}, v{pA} offset:{64*st+512*a+8*hh}")
        def fb(a): tcv[(st, "b", a)] = g.ds(f"ds_read_b128 {vr(b+32+4*a,4)}, v{pB} offset:{512*(7-a)+64*st}")
        out += [lambda: fa(0, 0), lambda: fa(0, 1)]
        for a in range(8): out.append(lambda a=a: fb(a))
        for a in range(1, 8): out += [lambda a=a: fa(a, 0), lambda a=a: fa(a, 1)]
        return out
    rq.add(*conv_read_items(0)); rq.pop(12)
    tok_h = {}; h_next = [0]
    def h_items(cnt):
        out = []
        for _ in range(cnt):
            n = h_next[0]
            if n >= 43: break
            h_next[0] += 1
            if n == 40: out.append(f"s_mov_b32 s{sHO}, s{sHE}")
            def f(n=n): tok_h[n] = g.vm(f"buffer_load_dwordx4 {ar(aH+4*(n%NHR),4)}, v{vL16}, {sr(S_WS,4)}, s{sHO} offen offset:{(n%4)*1024} sc1")
            out.append(f)
            if n % 4 == 3 and n < 39:
                out += [f"s_add_u32 s{sHO}, s{sHO}, 4096", f"s_cmp_ge_u32 s{sHO}, s{sHE}", f"s_cselect_b32 s{sHO}, s{sHS}, s{sHO}"]
        return out
    pollB_checked = False
    hq = Q()
    for st in range(4):
        b = vFR + 64 * (st % 2)
        if st < 3: rq.add(*conv_read_items(st + 1))
        if st == 0:
            for n in range(0, HB): fq.add(*held_items(n))
        if st == 1:
            dq.add(*glue(w2_items(HB)))
            for n in range(HB, NHELD): fq.add(*held_items(n))
        if st == 2:
            dq.add(*glue(w2_items(NHELD - HB)))
        if st == 3:
            for k in range(4):
                def f(k=k): tok["u"] = g.ds(f"ds_read_b64 {vr(vFR+2*k,2)}, v{pUR} offset:{1536-512*k}")
                rq.add(f)
        pairs = sorted((a, s - a) for s in range(8) for a in range(s + 1))
        first = set()
        nds_total = len(rq) + len(fq)
        for idx, (a, bb) in enumerate(pairs):
            acc = vY + 4 * (a + bb)
            c = "0" if (st == 0 and (a + bb) not in first) else vr(acc, 4)
            first.add(a + bb)
            g.wait(ds=max(tcv[(st, "a", a)], tcv[(st, "b", bb)]))
            I(f"v_mfma_f32_16x16x32_bf16 {vr(acc,4)}, {vr(b+4*a,4)}, {vr(b+32+4*bb,4)}, {c}")
            left = 36 - idx
            want = -(-(len(rq) + len(fq)) // left)
            k = rq.pop(1)
            if want > k: fq.pop(want - k) or rq.pop(want - k)
            if not dq.pop(1) and idx % o.h_gap == 0: hq.pop(1)
            if (st, idx) == o.flagb_at: try_flagB(True)
            if (st, idx) == o.pollb_at: tp = poll_issue(sPB, vF2)
            if (st, idx) == o.chkb_at:
                poll_check(tp, sPB, vF2); pollB_checked = True; stamp("pollB")
                hq.add(*glue(h_items(o.h_early)))
        rq.flush(); fq.flush(); dq.flush()
        if st == 0:
            g.wait(vm=tok_w2[NHELD-1], ds=g.nds-1); try_flagB(); I("s_barrier")
        if st == 1 and HB < NHELD:
            g.wait(ds=g.nds-1); I("s_barrier")
        if st == 2:
            g.wait(ds=g.nds-1); I("s_barrier")
    assert flagB_done
    stamp("conv")
    vU = vFR; vUF = vFR + 8; vYK = vFR + 24
    if not pollB_checked:
        poll_check(tp, sPB, vF2); stamp("pollB")
        hq.add(*glue(h_items(o.h_early))); hq.pop(8)
    tu = [tok["u"]] * 4
    lo, lj = g.label("LO"), g.label("LJ")
    g.wait(ds=tu[3])
    for k in range(4):
        I(f"v_and_b32 v{vUF+4*k}, 0xffff0000, v{vU+2*k+1}", f"v_lshlrev_b32 v{vUF+4*k+1}, 16, v{vU+2*k+1}",
          f"v_and_b32 v{vUF+4*k+2}, 0xffff0000, v{vU+2*k}", f"v_lshlrev_b32 v{vUF+4*k+3}, 16, v{vU+2*k}")
    hq.pop(1)
    I(f"s_cmp_lg_u32 s{sW0b}, 0", f"s_cbranch_scc1 {lo}")
    sv = (g.nds, g.ds_done)
    for par in range(2):
        g.nds, g.ds_done = sv
        keep, send = (vY, vY + 16) if par == 0 else (vY + 16, vY)
        for k in range(4):
            g.ds(f"ds_write_b128 v{pEXW}, {vr(send+4*k,4)} offset:{k*1024}")
            for j in range(4): I(f"v_fma_f32 v{vYK+4*k+j}, v{vUF+4*k+j}, v{pD}, v{keep+4*k+j}")
        if par == 0: I(f"s_branch {lj}", f"{lo}:")
    I(f"{lj}:")
    hq.pop(2)
    g.wait(ds=g.nds-1); I("s_barrier")
    vYX = vFR + 40
    tx = [g.ds(f"ds_read_b128 {vr(vYX+4*k,4)}, v{pEXR} offset:{k*1024}") for k in range(4)]
    vYP = vFR + 56
    hq.pop(2)
    for pr in range(2):
        g.wait(ds=tx[2*pr+1])
        for k in range(4): I(f"v_pk_add_f32 {vr(vYK+8*pr+2*k,2)}, {vr(vYK+8*pr+2*k,2)}, {vr(vYX+8*pr+2*k,2)}")
        for k in range(4): I(f"v_cvt_pk_bf16_f32 v{vYP+4*pr+k}, v{vYK+8*pr+2*k}, v{vYK+8*pr+2*k+1}")
        I(f"v_permlane16_swap_b32 v{vYP+4*pr}, v{vYP+4*pr+2}", f"v_permlane16_swap_b32 v{vYP+4*pr+1}, v{vYP+4*pr+3}")
        tok["yst"] = g.vm(f"buffer_store_dwordx4 {vr(vYP+4*pr,4)}, v{pYS}, {sr(S_WS,4)}, s{sYS} offen offset:{pr*1024} sc1")
    stamp("yst")
    vO2 = vACC
    vW2F = 96
    vYL, vXR, vST, vXF, vXN, vYV = 120, 128, 136, 144, 160, 176
    g.vm(f"buffer_load_dwordx4 {vr(vXR,4)}, v{pYG0}, {sr(S_Q,4)}, s{sTILE} offen")
    tok["x"] = g.vm(f"buffer_load_dwordx4 {vr(vXR+4,4)}, v{pYG1}, {sr(S_Q,4)}, s{sTILE} offen")
    g.ds(f"ds_read_b64 {vr(vST,2)}, v{pSTR}"); tst = g.ds(f"ds_read_b64 {vr(vST+2,2)}, v{pSTR} offset:64")
    hq.flush()
    emit(h_items(max(0, o.h_pre - h_next[0])))
    flagc_done = False; xdone = False; ywr = False
    for n in range(43):
        if NHELD <= n + 2 < 43: rq.add(*w2_read_items(n + 2, vW2F + 8 * ((n + 2) % 3), "v"))
        room = n + NHR - h_next[0]
        dq.add(*glue(h_items(min(room, 2))))
        for tl in range(2):
            g.wait(vm=tok_h[n], ds=trd.get((n, tl)) if n >= NHELD else None)
            a = ar(aW2 + 8 * n + 4 * tl, 4) if n < NHELD else vr(vW2F + 8 * (n % 3) + 4 * tl, 4)
            c = "0" if n == 0 else vr(vO2 + 16 * tl, 16)
            I(f"v_mfma_f32_32x32x16_bf16 {vr(vO2+16*tl,16)}, {a}, {ar(aH+4*(n%NHR),4)}, {c}")
            gap(5, (rq, 2), (dq, 2), (fq, 5))
        rq.flush(); dq.flush()
        if not flagc_done and (g.vm_done >= tok["yst"] or n == o.flagc_at):
            g.wait(vm=tok["yst"]); flag_store(sFC); flagc_done = True; stamp("flagC")
        if not xdone and g.vm_done >= tok["x"]:
            xdone = True; g.wait(ds=tst)
            for i in range(2): fq.add(f"v_mul_f32 v{vST+4+i}, v{vST+2*i}, v{vST+2*i+1}")
            for k in range(8): fq.add(f"v_lshlrev_b32 v{vXF+2*k}, 16, v{vXR+k}", f"v_and_b32 v{vXF+2*k+1}, 0xffff0000, v{vXR+k}")
            for k in range(16): fq.add(f"v_fma_f32 v{vXN+k}, v{vXF+k}, v{vST+2*(k//8)+1}, -v{vST+4+k//8}")
            for k in range(16): fq.add(f"v_mov_b32 v{vYV+k}, 0")
        if n == NHELD - 4:
            le, lb = g.label("LE"), g.label("LB")
            I("s_cmp_eq_u32 s2, 0", f"s_cbranch_scc1 {le}", f"{lb}:")
            save = g.L; g.L = []
            I(f"{le}:", f"v_lshrrev_b32 v{t0}, 5, v{vL}", f"v_lshlrev_b32 v{t0}, 14, v{t0}", f"v_and_b32 v{t1}, 31, v{vL}", f"v_lshl_add_u32 v{t0}, v{t1}, 7, v{t0}",
              f"s_lshl_b32 s{sT0}, s{sW}, 15", f"s_add_u32 s{sT1}, s{sT0}, {FA_OFF}", f"v_not_b32 v{vFL}, v{vNON}")
            svm = g.vm_done; poll_check(g.vm_done, sT1, t0); g.vm_done = svm
            I(f"s_branch {lb}")
            cold_code.extend(g.L); g.L = save
            g.wait(vm=tok_w2[42]); I("s_barrier")
            le2, lb2 = g.label("LE"), g.label("LB")
            I(f"s_or_b32 s{sT0}, s2, s{sW}", f"s_cbranch_scc0 {le2}", f"{lb2}:")
            cold_code.extend([f"{le2}:", f"s_mov_b32 s{sT1}, {E_OFF}", "s_mov_b64 exec, 1",
              f"buffer_store_dword v{vNON}, off, {sr(S_WS,4)}, s{sT1} sc1", "s_mov_b64 exec, -1", f"s_branch {lb2}"])
        if n == o.pollc_at:
            tpc = poll_issue(sPC, vF2)
        if n == o.ychk_at:
            poll_check(tpc, sPC, vF2)
            g.vm(f"buffer_load_dwordx4 {vr(vYL,4)}, v{pKG0}, {sr(S_WS,4)}, s{sYL} offen sc1")
            ty = g.vm(f"buffer_load_dwordx4 {vr(vYL+4,4)}, v{pKG1}, {sr(S_WS,4)}, s{sYL} offen sc1")
            stamp("pollC")
        if n == o.ywr_at:
            g.wait(vm=ty)
            g.ds(f"ds_write_b128 v{pYW0}, {vr(vYL,4)}"); tyw = g.ds(f"ds_write_b128 v{pYW1}, {vr(vYL+4,4)} offset:1024")
        if n == o.ywr_at + 1:
            fq.flush(); g.wait(ds=tyw); I("s_barrier"); ywr = True
            for i in range(2):
                for j in range(8):
                    def f(i=i, j=j): tok["yv"] = g.ds(f"ds_read_u16_d16_hi v{vYV+8*i+j}, v{pYR0+i} offset:{j*128}")
                    fq.add(f)
            fq.add(lambda: g.wait(ds=tok["yv"]))
            for k in range(16): fq.add(f"v_fmac_f32 v{vXF+k}, v{vXN+k}, v{vYV+k}")
    fq.flush()
    stamp("gemm2")
    for q in range(4): g.ds(f"ds_write_b128 v{pPW}, {vr(vO2+4*q,4)} offset:{32*q}")
    for q in range(4): g.ds(f"ds_write_b128 v{pPW1}, {vr(vO2+16+4*q,4)} offset:{32*q}")
    if not ywr:
        g.wait(vm=ty)
        g.ds(f"ds_write_b128 v{pYW0}, {vr(vYL,4)}"); g.ds(f"ds_write_b128 v{pYW1}, {vr(vYL+4,4)} offset:1024")
    g.wait(ds=g.nds-1); I("s_barrier")
    stamp("fin_bar")
    vF0 = 64
    tf = {}
    for i in range(2):
        for j in range(8 if not ywr else 0): g.ds(f"ds_read_u16_d16_hi v{vYV+8*i+j}, v{pYR0+i} offset:{j*128}")
        for p in range(2):
            for h in range(2):
                tf[i] = g.ds(f"ds_read_b128 {vr(vF0+16*i+8*p+4*h,4)}, v{pFR} offset:{i*8*PSTR+p*64*PSTR+16*h}")
    for i in range(2):
        g.wait(ds=tf[i])
        for k in range(4 if not ywr else 0): I(f"v_pk_fma_f32 {vr(vXF+8*i+2*k,2)}, {vr(vXN+8*i+2*k,2)}, {vr(vYV+8*i+2*k,2)}, {vr(vXF+8*i+2*k,2)}")
        for k in range(4): I(f"v_pk_add_f32 {vr(vF0+16*i+2*k,2)}, {vr(vF0+16*i+2*k,2)}, {vr(vF0+16*i+8+2*k,2)}")
        for k in range(4): I(f"v_pk_add_f32 {vr(vF0+16*i+2*k,2)}, {vr(vF0+16*i+2*k,2)}, {vr(vXF+8*i+2*k,2)}")
        for k in range(4): I(f"v_cvt_pk_bf16_f32 v{vF0+32+4*i+k}, v{vF0+16*i+2*k}, v{vF0+16*i+2*k+1}")
        g.vm(f"buffer_store_dwordx4 {vr(vF0+32+4*i,4)}, v{pYG0+i}, {sr(S_OUT,4)}, s{sTILE} offen")
    finish()
    return g, stamp_regs

HEADER = open("cdna_kernels/" + NAME + ".s.ref").read().split("; Override launch")[0]

def render(o):
    g, names = gen(o)
    body = pad_hazards(g.L)
    out = [HEADER.rstrip("\n"), f"; @launch grid=(256,1,1) block=(256,1,1) lds={LDS_BYTES}",
           '.amdgcn_target "amdgcn-amd-amdhsa--gfx950"', ".text", f".globl {NAME}_kernel", ".p2align 8", f".type {NAME}_kernel,@function", f"{NAME}_kernel:"]
    out += [("" if l.endswith(":") else "    ") + l for l in body]
    out.append(f""".section .rodata,"a"
.p2align 6
.amdhsa_kernel {NAME}_kernel
  .amdhsa_next_free_vgpr 512
  .amdhsa_next_free_sgpr 102
  .amdhsa_accum_offset 256
  .amdhsa_group_segment_fixed_size 0
  .amdhsa_kernarg_size 96
  .amdhsa_user_sgpr_count 2
  .amdhsa_user_sgpr_kernarg_segment_ptr 1
  .amdhsa_system_sgpr_workgroup_id_x 1
.end_amdhsa_kernel""")
    return "\n".join(out) + "\n", names

def parse(argv=None):
    import argparse
    ap = argparse.ArgumentParser()
    ap.add_argument("-o", default="cdna_kernels/" + NAME + ".s")
    ap.add_argument("--stamps", action="store_true")
    ap.add_argument("--npre", type=int, default=60)
    ap.add_argument("--kv", default="-2,-2,-2,-2,-2,-2")
    ap.add_argument("--kv_blk", type=int, default=-1)
    ap.add_argument("--G", type=int, default=4)
    ap.add_argument("--probe", type=int, default=0)
    ap.add_argument("--w2e", default="0,0,0,2,3")
    ap.add_argument("--ssm_shadow", type=int, default=0)
    ap.add_argument("--held_split", type=int, default=7)
    ap.add_argument("--h_gap", type=int, default=3)
    ap.add_argument("--ywr", type=int, default=99)
    ap.add_argument("--c1_early", type=int, default=0)
    ap.add_argument("--flaga_lag", type=int, default=9)
    ap.add_argument("--polla_at", type=int, default=7)
    ap.add_argument("--kvt_at", type=int, default=0)
    ap.add_argument("--ssm_at", type=int, default=5)
    ap.add_argument("--pace", default="4,4,4,3,3,3,3")
    ap.add_argument("--touch", type=int, default=0)
    ap.add_argument("--flagb", default="1,0")
    ap.add_argument("--pollb", default="3,10")
    ap.add_argument("--chkb", default="9,9")
    ap.add_argument("--h_early", type=int, default=12)
    ap.add_argument("--h_pre", type=int, default=12)
    ap.add_argument("--nhr", type=int, default=36)
    ap.add_argument("--flagc", type=int, default=99)
    ap.add_argument("--pollc", type=int, default=24)
    ap.add_argument("--ychk", type=int, default=38)
    a = ap.parse_args(argv)
    T = lambda s: tuple(int(x) for x in s.split(","))
    a.flagb_at, a.pollb_at, a.chkb_at, a.kv_sched, a.w2_pace = T(a.flagb), T(a.pollb), T(a.chkb), T(a.kv), T(a.pace)
    a.flagc_at, a.pollc_at, a.ychk_at, a.ywr_at = a.flagc, a.pollc, a.ychk, a.ywr
    a.w2_early = T(a.w2e)
    return a

if __name__ == "__main__":
    a = parse()
    s, names = render(a)
    open(a.o, "w").write(s)
    if a.stamps: open(a.o + ".names", "w").write("\n".join(names))
```

```python
import sys
from asmlib import *

NAME = "parallel_sum__ssm_conv_h3__dense_activation_silu__prompt"

H_OFF, KVT_OFF, YT_OFF = 0, 0x600000, 0x800000
FA_OFF, FB_OFF, FC_OFF, E_OFF, DBG_OFF = 0xA00000, 0xA20000, 0xA40000, 0xA60000, 0xB00000
WS_BYTES = 0x1000000
L_W1, L_Q = 0, 49152
L_SSM, CSTR = 98304, 4160
L_U, USTR = 131584, 4608
L_CS, L_STAT = 140800, 142336
L_Z = 143360
L_PART, PSTR = L_SSM, 272
L_YI = L_SSM + 2*64*272
L_EX = L_SSM
LDS_BYTES = 163840
S_Q, S_K, S_V, S_W1, S_W1U, S_W2, S_SSM, S_WS, S_WSU, S_OUT = 28, 32, 36, 40, 44, 48, 52, 56, 60, 64
sX, sC, sW, sR, sJ, sE, sNON, sUS, sKAP, sOQ, sOW, sWK = 68, 69, 70, 71, 72, 73, 74, 75, 76, 77, 78, 79
sT0, sT1, sT2, sT3 = 80, 81, 82, 83
sW2O, sW2S, sW2E, sHO, sHS, sHE = 84, 85, 86, 87, 88, 89
sSPIN, sW3K, sHST, sHST2 = 90, 91, 92, 93
sCH, sS32 = 8, 9
sPSH, sPD = 10, 14
sKVS, sFA, sPA, sPB, sPC, sFB, sFC, sYS, sKVL, sYL, sZP, sTILE, sKVM, sW1b, sW0b = 12, 13, 16, 17, 18, 19, 20, 21, 22, 23, 24, 25, 26, 27, 3

class Opt:
    stop = 99; stamps = False

def gen(o):
    g = Gen(); I = g.I
    stamp_regs = []
    cold_code = []
    def stamp(name):
        if not o.stamps: return
        if o.only and name not in o.only.split(","): return
        idx = len(stamp_regs); stamp_regs.append(name)
        I("s_memtime s[94:95]", "s_memrealtime s[98:99]", "s_waitcnt lgkmcnt(0)", f"v_writelane_b32 v255, s94, {idx}", f"v_writelane_b32 v254, s98, {idx}")
        g.ds_done = g.nds - 1
    def finish():
        if o.stamps:
            stamp("end")
            I("s_memrealtime s[94:95]", "s_waitcnt lgkmcnt(0)", "v_writelane_b32 v255, s94, 62", f"v_writelane_b32 v255, s96, 63")
            I(f"s_lshl_b32 s{sT0}, s2, 2", f"s_add_u32 s{sT0}, s{sT0}, s{sW}", f"s_lshl_b32 s{sT0}, s{sT0}, 8", f"s_add_u32 s{sT0}, s{sT0}, {DBG_OFF}")
            I("v_lshlrev_b32 v253, 2, v1")
            g.vm(f"buffer_store_dword v255, v253, {sr(S_WS,4)}, s{sT0} offen")
            I(f"s_add_u32 s{sT0}, s{sT0}, 0x40000")
            g.vm(f"buffer_store_dword v254, v253, {sr(S_WS,4)}, s{sT0} offen")
        I("LEND:", "s_endpgm")
        for x in cold_code: I(x)

    class Q:
        def __init__(s): s.q = []
        def add(s, *x): s.q.extend(x)
        def pop(s, n=1):
            k = 0
            while s.q and k < n:
                x = s.q.pop(0); k += 1
                if callable(x): x()
                else: I(x)
            return k
        def flush(s): s.pop(10**9)
        def __len__(s): return len(s.q)
    def gap(budget, *qs):
        for q, mx in qs:
            budget -= q.pop(min(budget, mx))
            if budget <= 0: break

    vL = 1
    vQG = 2
    vW1G = 6
    vL16 = 7
    vQR = 8
    vW1R = 12
    vW2G = 16
    vW2R = 20
    vT = 26
    vMASK = 32
    vSUM = 36
    vCS = 40
    vSQ = 52
    vNON, vFL = 56, 57
    vF1, vF2 = 58, 59
    vC1 = 60
    vSD = 62
    vACC = 64
    vQF = 112
    aWF = 216
    vS = 144
    vX = 180
    vP = 224
    (pKTR, pKSW, pKSR, pKG0, pKG1, pCSW, pCSR, pSTW, pSSM, pCW, pUW, pZW, pA, pB, pEXW, pEXR, pUR, pYS, pD,
     pYG0, pYG1, pYW0, pYW1, pYR0, pYR1, pSTR, pPW, pPW1, pFR) = range(vP, vP + 29)
    vWT = vS
    t0, t1, t2, t3, t4, t5 = range(vT, vT + 6)

    I(f"s_cmp_ge_u32 s2, 256", "s_cbranch_scc1 LEND")
    if o.stamps:
        I("s_memrealtime s[96:97]"); stamp("entry")
    for srd, off in ((S_Q, 0), (S_W1, 56), (S_W1U, 56), (S_K, 8), (S_V, 16), (sPSH, 24), (S_WS, 88), (S_WSU, 88), (S_SSM, 32), (sPD, 40), (S_W2, 64), (S_OUT, 72)):
        I(f"s_load_dwordx2 {sr(srd,2)}, s[0:1], {off}")
    I("s_getpc_b64 s[4:5]", "LPC:")
    I(f"v_and_b32 v{vL}, 63, v0", f"v_lshrrev_b32 v{t0}, 6, v0")
    I(f"s_and_b32 s{sX}, s2, 7", f"s_lshr_b32 s{sC}, s2, 3")
    I(f"v_readfirstlane_b32 s{sW}, v{t0}")
    I(f"s_lshl_b32 s{sT0}, s{sC}, 2", f"s_add_u32 s{sT0}, s{sT0}, s{sW}", f"s_lshl_b32 s{sT0}, s{sT0}, 8")
    I(f"v_lshlrev_b32 v{t0}, 7, v{vL}", f"v_add_u32 v{t0}, s{sT0}, v{t0}", f"v_min_u32 v{t0}, LEND-LPC, v{t0}")
    I("s_mov_b64 exec, 3")
    g.vm(f"global_load_dword v{vFL}, v{t0}, s[4:5]")
    I("s_mov_b64 exec, -1")
    I(f"s_mov_b32 s{S_K+3}, 0x20000", f"s_mov_b32 s{S_K+2}, 0x200000")
    for srd in (S_V, S_Q): I(f"s_mov_b32 s{srd+3}, s{S_K+3}", f"s_mov_b32 s{srd+2}, s{S_K+2}")
    I(f"s_mov_b32 s{S_W1+3}, s{S_K+3}", f"s_mov_b32 s{S_W1+2}, {512*1376*2}", f"s_mov_b32 s{S_W1U+3}, s{S_K+3}")
    I(f"s_and_b32 s{sE}, s{sX}, 1", f"s_and_b32 s{sJ}, s{sC}, 7", f"s_lshr_b32 s{sT0}, s{sC}, 3",
      f"s_lshr_b32 s{sR}, s{sX}, 1", f"s_lshl_b32 s{sR}, s{sR}, 2", f"s_add_u32 s{sR}, s{sR}, s{sT0}")
    if o.G == 8: I(f"s_lshl_b32 s{sKAP}, s{sT0}, 1", f"s_add_u32 s{sKAP}, s{sKAP}, s{sJ}", f"s_and_b32 s{sKAP}, s{sKAP}, 7")
    else: I(f"s_add_u32 s{sKAP}, s{sT0}, s{sJ}", f"s_and_b32 s{sKAP}, s{sKAP}, {o.G-1}")
    I(f"s_mul_i32 s{sUS}, s{sE}, 22", f"s_mul_i32 s{sT1}, s{sJ}, 3", f"s_add_u32 s{sUS}, s{sUS}, s{sT1}",
      f"s_add_u32 s{sT1}, s{sJ}, s{sE}", f"s_max_u32 s{sT2}, s{sT1}, 6", f"s_sub_u32 s{sT2}, s{sT2}, 6", f"s_sub_u32 s{sUS}, s{sUS}, s{sT2}",
      f"s_cmp_lt_u32 s{sT1}, 6", f"s_cselect_b32 s{S_W1U+2}, s{S_W1+2}, 0", f"s_cselect_b32 s{S_WSU+2}, {WS_BYTES}, 0")
    I(f"s_lshl_b32 s{sWK}, s{sW}, 10", f"s_mul_i32 s{sW3K}, s{sW}, 3072", f"s_and_b32 s{sW0b}, s{sW}, 1", f"s_lshr_b32 s{sW1b}, s{sW}, 1")
    I(f"v_lshrrev_b32 v{t1}, 3, v{vL}", f"v_lshlrev_b32 v{t1}, 10, v{t1}", f"v_and_b32 v{t2}, 7, v{vL}", f"v_lshl_add_u32 v{t3}, v{t2}, 4, v{t1}",
      f"v_lshrrev_b32 v{t4}, 4, v{vL}", f"v_xor_b32 v{t4}, v{t2}, v{t4}", f"v_lshl_add_u32 v{t4}, v{t4}, 4, v{t1}")
    I(f"s_lshl_b32 s{sT0}, s{sR}, 17", f"s_lshl_b32 s{sT1}, s{sW}, 15", f"s_add_u32 s{sT0}, s{sT0}, s{sT1}")
    I(f"v_add_u32 v{vQG}, s{sT0}, v{t4}", f"v_xor_b32 v{vQG+1}, 64, v{vQG}", f"v_add_u32 v{vQG+1}, 0x2000, v{vQG+1}",
      f"v_add_u32 v{vQG+2}, 0x4000, v{vQG}", f"v_add_u32 v{vQG+3}, 0x4000, v{vQG+1}")
    I(f"s_lshl_b32 s{sT0}, s{sW}, 4", f"v_lshrrev_b32 v{t5}, 2, v{vL}", f"v_add_u32 v{t5}, s{sT0}, v{t5}",
      f"v_mul_u32_u24 v{t5}, 2752, v{t5}", f"v_and_b32 v{t0}, 3, v{vL}", f"v_lshl_add_u32 v{t5}, v{t0}, 4, v{t5}",
      f"s_lshl_b32 s{sT0}, s{sUS}, 6", f"v_add_u32 v{vW1G}, s{sT0}, v{t5}")
    I(f"s_lshl_b32 s{sT0}, s{sC}, 16", f"s_lshl_b32 s{sT1}, s{sW}, 14", f"s_add_u32 s{sT0}, s{sT0}, s{sT1}",
      f"s_lshl_b32 s{sT1}, s{sX}, 7", f"s_add_u32 s{sT0}, s{sT0}, s{sT1}",
      f"v_add_u32 v{vX+1}, s{sT0}, v{t3}", f"v_add_u32 v{vX}, 0xffffe000, v{vX+1}", f"v_add_u32 v{vX+2}, 0x2000, v{vX+1}",
      f"s_lshl_b32 s{sT1}, s{sX}, 9", f"v_lshl_add_u32 v{vX+3}, v{vL}, 3, s{sT1}",
      f"s_mul_i32 s{sKVM}, s{sW}, 5120", f"s_add_u32 s{sKVM}, s{sKVM}, {L_Z}")
    I(f"v_mov_b32 v{pYG0}, v{t3}")

    tok_chunk = {}
    def chunk_items(i):
        w, q = [], []
        w += [f"s_lshl_b32 s{sOQ}, s{sKAP}, 7", f"s_mul_i32 s{sOW}, s{sKAP}, {64*2752}", f"s_add_u32 s{sKAP}, s{sKAP}, 1"]
        for u in range(3):
            w.append(f"s_add_u32 m0, s{sW3K}, {L_W1 + (i%4)*12288 + u*1024 - u*64}")
            if u == 0: w.append(f"s_and_b32 s{sKAP}, s{sKAP}, {o.G-1}")
            if u == 1 and ((i + 1) & ~(o.G-1)): w.append(f"s_or_b32 s{sKAP}, s{sKAP}, {(i+1) & ~(o.G-1)}")
            w.append(lambda u=u: g.vm(f"buffer_load_dwordx4 v{vW1G}, {sr(S_W1U if u==2 else S_W1,4)}, s{sOW} offen offset:{u*64} lds"))
        for k in range(4):
            q.append(f"s_add_u32 m0, s{sWK}, {L_Q + (i%3)*16384 + k*4096}")
            def f(k=k):
                t = g.vm(f"buffer_load_dwordx4 v{vQG+k}, {sr(S_Q,4)}, s{sOQ} offen lds")
                if k == 3: tok_chunk[i] = t
            q.append(f)
        return w, q
    def emit(items):
        for x in items:
            if callable(x): x()
            else: I(x)

    S = []
    A = lambda *x: S.extend(x)
    A(f"s_mov_b32 s{S_WS+3}, s{S_K+3}", f"s_mov_b32 s{S_WS+2}, {WS_BYTES}", f"s_mov_b32 s{S_WSU+3}, s{S_K+3}",
      f"s_mov_b32 s{S_W2+3}, s{S_K+3}", f"s_mov_b32 s{S_W2+2}, s{S_W1+2}",
      f"s_mov_b32 s{S_OUT+3}, s{S_K+3}", f"s_mov_b32 s{S_OUT+2}, s{S_K+2}",
      f"s_mov_b32 s{S_SSM+3}, s{S_K+3}", f"s_mov_b32 s{S_SSM+2}, 4096")
    A(f"v_lshlrev_b32 v{vL16}, 4, v{vL}")
    A(f"v_and_b32 v{t0}, 16, v{vL}", f"v_lshlrev_b32 v{t0}, 1, v{t0}", f"v_and_b32 v{t1}, 3, v{vL}", f"v_lshl_add_u32 v{t5}, v{t1}, 3, v{t0}",
      f"v_lshrrev_b32 v{t0}, 5, v{vL}", f"v_bfe_u32 v{t1}, v{vL}, 2, 2")
    A(f"v_lshl_add_u32 v{t2}, v{t0}, 3, v{t1}", f"v_lshl_add_u32 v{t2}, v{t2}, 6, v{t5}")
    A(f"v_bfe_u32 v{t3}, v{vL}, 3, 2", f"v_lshlrev_b32 v{t3}, 12, v{t3}", f"v_and_b32 v{t4}, 7, v{vL}", f"v_lshl_add_u32 v{t3}, v{t4}, 7, v{t3}",
      f"s_add_u32 s{sT0}, s{sWK}, {L_Q}", f"v_add_u32 v{t3}, s{sT0}, v{t3}",
      f"v_bfe_u32 v{t4}, v{vL}, 1, 3", f"v_xor_b32 v{t4}, v{t4}, v{t0}", f"v_lshl_add_u32 v{t3}, v{t4}, 4, v{t3}")
    for i in range(4):
        A(f"s_add_u32 s{sT0}, s{sW}, {i}", f"s_and_b32 s{sT0}, s{sT0}, 3", f"s_mul_i32 s{sT1}, s{sT0}, 3072", f"s_lshl_b32 s{sT0}, s{sT0}, 5",
          f"v_add_u32 v{vW1R+i}, s{sT1}, v{t2}", f"v_xor_b32 v{vQR+i}, s{sT0}, v{t3}")
    A(f"v_lshrrev_b32 v{t2}, 4, v{vL}", f"v_xor_b32 v{t2}, v{t2}, v{vL}", f"v_and_b32 v{t2}, 1, v{t2}", f"v_cmp_eq_u32 vcc, 0, v{t2}",
      f"v_mov_b32 v{t3}, 0x3f803f80", f"v_mov_b32 v{vSQ}, 0", f"v_cndmask_b32 v{vMASK}, 0, v{t3}, vcc")
    for i in range(1, 4): A(f"v_mov_b32 v{vMASK+i}, v{vMASK}", f"v_mov_b32 v{vSQ+i}, 0")
    A(f"v_lshl_add_u32 v{t2}, v{t1}, 7, v{t5}", f"v_lshl_add_u32 v{t2}, v{t0}, 6, v{t2}", f"v_add_u32 v{pKTR}, s{sKVM}, v{t2}")
    A(f"s_lshl_b32 s{sT0}, s{sW}, 5", f"s_sub_u32 s{sT0}, {L_U+96}, s{sT0}", f"v_mul_u32_u24 v{t2}, 144, v{vL}", f"v_add_u32 v{pKSW}, s{sT0}, v{t2}",
      f"s_lshl_b32 s{sT0}, s{sW}, 4", f"v_lshrrev_b32 v{t2}, 3, v{vL}", f"v_add_u32 v{t3}, s{sT0}, v{t2}", f"v_and_b32 v{t4}, 7, v{vL}", f"v_lshlrev_b32 v{t4}, 4, v{t4}",
      f"v_mul_u32_u24 v{pKSR}, 144, v{t3}", f"v_add_u32 v{pKSR}, v{pKSR}, v{t4}", f"v_add_u32 v{pKSR}, {L_U}, v{pKSR}",
      f"v_lshl_add_u32 v{pKG0}, v{t3}, 12, v{t4}", f"v_add_u32 v{pKG1}, 0x8000, v{pKG0}",
      f"s_lshl_b32 s{sT0}, s{sX}, 18", f"s_lshl_b32 s{sT1}, s{sC}, 7", f"s_sub_u32 s{sT0}, s{sT0}, s{sT1}", f"s_add_u32 s{sKVS}, s{sT0}, {KVT_OFF+3968}")
    NA = len(S)
    A(f"v_lshrrev_b32 v{t0}, 5, v{vL}", f"v_bfe_u32 v{t1}, v{vL}, 2, 2")
    A(f"v_lshl_add_u32 v{t2}, v{t0}, 2, v{t1}", f"v_lshl_add_u32 v{t2}, v{t2}, 7, v{t5}",
      f"v_and_b32 v{t3}, 8, v{vL}", f"v_lshl_add_u32 v{t2}, v{t3}, 3, v{t2}",
      f"s_mul_i32 s{sT0}, s{sW1b}, {2048+64}", f"v_xor_b32 v{vW2R}, s{sT0}, v{t2}", f"v_xor_b32 v{vW2R+1}, 64, v{vW2R}",
      f"v_add_u32 v{vW2R+2}, 49152, v{vW2R}", f"v_add_u32 v{vW2R+3}, 49152, v{vW2R+1}",
      f"v_add_u32 v{vW2R+4}, 98304, v{vW2R}", f"v_add_u32 v{vW2R+5}, 98304, v{vW2R+1}")
    A(f"s_lshl_b32 s{sT0}, s{sW0b}, 13", f"s_lshl_b32 s{sT1}, s{sJ}, 7", f"s_add_u32 s{sT0}, s{sT0}, s{sT1}",
      f"v_and_b32 v{t3}, 16, v{vL}", f"v_lshlrev_b32 v{t3}, 2, v{t3}", f"v_xor_b32 v{t2}, v{pYG0}, v{t3}", f"v_add_u32 v{vW2G}, s{sT0}, v{t2}")
    for k in range(1, 4): A(f"v_add_u32 v{vW2G+k}, {16384*k}, v{vW2G}")
    A(f"s_and_b32 s{sT1}, s{sR}, 3", f"s_mul_i32 s{sT1}, s{sT1}, 5", f"s_add_u32 s{sT1}, s{sT1}, 1", f"s_lshr_b32 s{sT1}, s{sT1}, 1", f"s_add_u32 s{sT0}, s{sJ}, s{sT1}",
      f"s_sub_u32 s{sT1}, s{sT0}, 10", f"s_min_u32 s{sT0}, s{sT0}, s{sT1}",
      f"s_mul_i32 s{sT1}, s{sW1b}, 43",
      f"s_lshl_b32 s{sW2S}, s{sT1}, 14", f"s_add_u32 s{sW2E}, s{sW2S}, {40*16384}",
      f"s_lshl_b32 s{sT2}, s{sT0}, 16", f"s_add_u32 s{sW2O}, s{sW2S}, s{sT2}",
      f"s_lshl_b32 s{sT2}, s{sR}, 2", f"s_lshl_b32 s{sT3}, s{sE}, 1", f"s_add_u32 s{sT3}, s{sT2}, s{sT3}", f"s_add_u32 s{sS32}, s{sT3}, s{sW0b}",
      f"s_mul_i32 s{sT3}, s{sS32}, 86", f"s_add_u32 s{sT3}, s{sT3}, s{sT1}", f"s_lshl_b32 s{sHS}, s{sT3}, 10",
      f"s_add_u32 s{sHE}, s{sHS}, {40*1024}", f"s_lshl_b32 s{sT3}, s{sT0}, 12", f"s_add_u32 s{sHO}, s{sHS}, s{sT3}",
      f"s_add_u32 s{sT2}, s{sT2}, s{sW}",
      f"s_mul_i32 s{sT3}, s{sT2}, 86", f"s_lshl_b32 s{sT0}, s{sUS}, 1", f"s_add_u32 s{sT3}, s{sT3}, s{sT0}", f"s_lshl_b32 s{sHST}, s{sT3}, 10", f"s_add_u32 s{sHST2}, s{sHST}, 4096",
      f"s_lshl_b32 s{sT2}, s{sT2}, 4", f"s_lshl_b32 s{sT3}, s{sE}, 3", f"s_add_u32 s{sT2}, s{sT2}, s{sT3}", f"s_add_u32 s{sT2}, s{sT2}, s{sJ}", f"s_lshl_b32 s{sT2}, s{sT2}, 7", f"s_add_u32 s{sFB}, s{sT2}, {FB_OFF}",
      f"s_lshl_b32 s{sT2}, s{sS32}, 11", f"s_add_u32 s{sPB}, s{sT2}, {FB_OFF}")
    A(f"s_lshl_b32 s{sT0}, s{sX}, 6", f"s_lshl_b32 s{sT1}, s{sC}, 1", f"s_add_u32 s{sT1}, s{sT1}, s{sW1b}", f"s_add_u32 s{sCH}, s{sT0}, s{sT1}",
      f"s_lshl_b32 s{sT2}, s{sX}, 1", f"s_add_u32 s{sT2}, s{sT2}, s{sW0b}", f"s_lshl_b32 s{sT2}, s{sT2}, 6", f"s_add_u32 s{sT2}, s{sT2}, s{sT1}", f"s_lshl_b32 s{sT2}, s{sT2}, 7", f"s_add_u32 s{sFC}, s{sT2}, {FC_OFF}",
      f"s_lshl_b32 s{sT0}, s{sCH}, 12", f"s_add_u32 s{S_SSM}, s{S_SSM}, s{sT0}", f"s_addc_u32 s{S_SSM+1}, s{S_SSM+1}, 0",
      f"s_lshl_b32 s{sT1}, s{sW0b}, 11", f"s_add_u32 s{sT0}, s{sT0}, s{sT1}", f"s_add_u32 s{sKVL}, s{sT0}, {KVT_OFF}", f"s_add_u32 s{sYS}, s{sT0}, {YT_OFF}",
      f"v_add_u32 v{pSSM}, s{sT1}, v{vL16}",
      f"s_mul_i32 s{sT2}, s{sW1b}, {4*CSTR}", f"s_add_u32 s{sT2}, s{sT2}, {L_SSM}",
      f"s_mul_i32 s{sT3}, s{sW1b}, {USTR}", f"s_add_u32 s{sT3}, s{sT3}, {L_U}",
      f"s_add_u32 s{sZP}, s{sT2}, s{sT1}", f"v_add_u32 v{pUW}, s{sT3}, v{pSSM}",
      f"v_lshrrev_b32 v{t2}, 1, v{vL}", f"v_lshlrev_b32 v{vF1}, 7, v{t2}", f"v_mul_u32_u24 v{t2}, {CSTR}, v{t2}", f"v_and_b32 v{t3}, 1, v{vL}", f"v_lshl_add_u32 v{t2}, v{t3}, 4, v{t2}", f"v_add_u32 v{t2}, s{sT2}, v{t2}",
      f"s_add_u32 s{sT0}, s{sT3}, {4096-128}", f"v_add_u32 v{t3}, s{sT0}, v{vL16}", f"v_cmp_gt_u32 vcc, 8, v{vL}", f"v_lshrrev_b32 v{vF2}, 2, v{vL}", f"v_lshlrev_b32 v{vF2}, 7, v{vF2}", f"v_cndmask_b32 v{pZW}, v{t3}, v{t2}, vcc",
      f"s_lshl_b32 s{sT0}, s{sW0b}, 8", f"v_and_b32 v{t2}, 15, v{vL}", f"v_and_b32 v{t3}, 48, v{vL}",
      f"s_add_u32 s{sT1}, s{sT3}, s{sT0}", f"s_add_u32 s{sT1}, s{sT1}, 480", f"v_add_u32 v{t4}, s{sT1}, v{t3}", f"v_lshlrev_b32 v{pYS}, 5, v{t2}", f"v_sub_u32 v{pB}, v{t4}, v{pYS}",
      f"v_add_u32 v{t2}, 1, v{t2}", f"v_and_b32 v{t4}, 3, v{t2}", f"v_mul_u32_u24 v{t4}, {CSTR}, v{t4}", f"v_lshrrev_b32 v{t2}, 2, v{t2}", f"v_lshl_add_u32 v{t4}, v{t2}, 3, v{t4}",
      f"s_add_u32 s{sT1}, s{sT2}, s{sT0}", f"v_add3_u32 v{pA}, v{t4}, v{t3}, s{sT1}",
      f"s_lshl_b32 s{sT0}, s{sW0b}, 11", f"s_sub_u32 s{sT0}, s{sT3}, s{sT0}", f"s_add_u32 s{sT0}, s{sT0}, {4088-1536}", f"v_lshrrev_b32 v{t3}, 1, v{t3}", f"v_add_u32 v{t3}, v{t3}, v{pYS}", f"v_sub_u32 v{pUR}, s{sT0}, v{t3}",
      f"v_and_b32 v{t3}, 16, v{vL}", f"v_lshl_add_u32 v{pYS}, v{t3}, 5, v{pYS}", f"v_lshl_add_u32 v{pYS}, v{t0}, 4, v{pYS}",
      f"s_lshl_b32 s{sT0}, s{sW}, 12", f"s_add_u32 s{sT0}, s{sT0}, {L_EX}", f"v_add_u32 v{pEXW}, s{sT0}, v{vL16}", f"v_xor_b32 v{pEXR}, 4096, v{pEXW}")
    A(f"s_lshl_b32 s{sT0}, s{sW}, 4", f"v_lshrrev_b32 v{t2}, 3, v{vL}", f"v_add_u32 v{t3}, s{sT0}, v{t2}", f"v_and_b32 v{t4}, 7, v{vL}", f"v_lshlrev_b32 v{t4}, 4, v{t4}",
      f"v_mul_u32_u24 v{pFR}, {PSTR}, v{t3}", f"v_lshl_add_u32 v{pFR}, v{t4}, 1, v{pFR}", f"v_add_u32 v{pFR}, {L_PART}, v{pFR}",
      f"s_lshl_b32 s{sT0}, s{sX}, 2", f"s_add_u32 s{sT1}, s{sT0}, s{sW}", f"s_lshl_b32 s{sT1}, s{sT1}, 5", f"s_add_u32 s{sT1}, s{sT1}, s{sC}", f"s_lshl_b32 s{sT1}, s{sT1}, 7", f"s_add_u32 s{sFA}, s{sT1}, {FA_OFF}",
      f"s_lshr_b32 s{sT1}, s{sC}, 3", f"s_add_u32 s{sT0}, s{sT0}, s{sT1}", f"s_lshl_b32 s{sT0}, s{sT0}, 12", f"s_add_u32 s{sPA}, s{sT0}, {FA_OFF}",
      f"s_lshl_b32 s{sT0}, s{sJ}, 1", f"s_lshr_b32 s{sT1}, s{sR}, 3", f"s_add_u32 s{sT0}, s{sT0}, s{sT1}", f"s_lshl_b32 s{sT0}, s{sT0}, 2", f"s_add_u32 s{sT0}, s{sT0}, s{sW}", f"s_lshl_b32 s{sT0}, s{sT0}, 11", f"s_add_u32 s{sPC}, s{sT0}, {FC_OFF}",
      f"s_lshl_b32 s{sT0}, s{sJ}, 18", f"s_lshl_b32 s{sT1}, s{sR}, 8", f"s_add_u32 s{sT0}, s{sT0}, s{sT1}", f"s_lshl_b32 s{sT1}, s{sE}, 7", f"s_add_u32 s{sT0}, s{sT0}, s{sT1}", f"s_add_u32 s{sYL}, s{sT0}, {YT_OFF}",
      f"s_lshl_b32 s{sT0}, s{sR}, 17", f"s_lshl_b32 s{sT1}, s{sE}, 16", f"s_add_u32 s{sT0}, s{sT0}, s{sT1}", f"s_lshl_b32 s{sT1}, s{sW}, 14", f"s_add_u32 s{sT0}, s{sT0}, s{sT1}",
      f"s_lshl_b32 s{sT1}, s{sJ}, 7", f"s_add_u32 s{sTILE}, s{sT0}, s{sT1}")
    A(f"s_lshl_b32 s{sT0}, s{sE}, 9", f"s_add_u32 s{sT0}, s{sT0}, {L_STAT}", f"v_lshl_add_u32 v{pSTR}, v{t3}, 3, s{sT0}",
      f"s_lshl_b32 s{sT0}, s{sW}, 5", f"v_xor_b32 v{t5}, s{sT0}, v{t4}", f"v_lshl_add_u32 v{pYW0}, v{t3}, 7, v{t5}", f"v_add_u32 v{pYW0}, {L_YI}, v{pYW0}", f"v_xor_b32 v{pYW1}, 16, v{pYW0}",
      f"v_lshl_add_u32 v{t5}, v{t4}, 6, v{t5}", f"v_lshl_add_u32 v{t5}, v{t2}, 1, v{t5}", f"v_add_u32 v{pYR0}, {L_YI}, v{t5}", f"v_xor_b32 v{pYR1}, 16, v{pYR0}",
      f"v_add_u32 v{pYG1}, 0x2000, v{pYG0}")
    A(f"v_and_b32 v{t2}, 31, v{vL}", f"v_lshlrev_b32 v{t3}, 4, v{t2}", f"v_add_u32 v{pCSR}, {L_CS}, v{t3}", f"s_lshl_b32 s{sT0}, s{sW}, 2", f"v_add_u32 v{pCSW}, s{sT0}, v{pCSR}",
      f"s_lshl_b32 s{sT0}, s{sW}, 8", f"s_add_u32 s{sT0}, s{sT0}, {L_STAT}", f"v_lshl_add_u32 v{pSTW}, v{t2}, 3, s{sT0}",
      f"s_mul_i32 s{sT0}, s{sW}, {32*PSTR}", f"s_add_u32 s{sT0}, s{sT0}, {L_PART}", f"v_mul_u32_u24 v{t3}, {PSTR}, v{t2}", f"v_lshl_add_u32 v{t3}, v{t0}, 4, v{t3}",
      f"s_lshl_b32 s{sT1}, s{sW1b}, 7", f"s_add_u32 s{sT2}, s{sT0}, s{sT1}", f"v_add_u32 v{pPW}, s{sT2}, v{t3}",
      f"s_xor_b32 s{sT1}, s{sT1}, 128", f"s_add_u32 s{sT2}, s{sT0}, s{sT1}", f"v_add_u32 v{pPW1}, s{sT2}, v{t3}")
    A(f"s_lshr_b32 s{sT0}, s{sCH}, 1", f"s_lshl_b32 s{sT0}, s{sT0}, 2", f"v_mov_b32 v{pD}, s{sT0}")

    NPRE = o.npre
    pre_part = [x for x in S[:NPRE]]
    assert not any(f"s{S_SSM}," in x for x in pre_part)
    emit(pre_part)
    I("s_waitcnt lgkmcnt(0)")
    stamp("kernarg")
    if o.probe:
        I("s_load_dwordx2 s[94:95], s[0:1], 48", f"s_lshl_b32 s{sT0}, s2, 13", f"v_lshl_add_u32 v{vS}, v0, 2, s{sT0}", "s_waitcnt lgkmcnt(0)")
        for r in range(o.probe):
            I(f"global_load_dword v{vS+1}, v{vS}, s[94:95]", f"v_add_u32 v{vS}, 1024, v{vS}", "s_waitcnt vmcnt(0)")
        stamp("probe")
    tok = {}
    kvl = []
    for i in range(3): kvl.append([f"s_add_u32 m0, s{sKVM}, {i*1024}", lambda i=i: g.vm(f"buffer_load_dwordx4 v{vX+i}, {sr(S_K,4)}, 0 offen lds")])
    for i in range(2): kvl.append([f"s_add_u32 m0, s{sKVM}, {(3+i)*1024}", lambda i=i: g.vm(f"buffer_load_dwordx4 v{vX+1+i}, {sr(S_V,4)}, 0 offen lds")])
    def kvw(): tok["kv"] = g.vm(f"global_load_dwordx2 {vr(vWT,2)}, v{vX+3}, {sr(sPSH,2)}")
    kvl.append([kvw])
    def kv_items(pos):
        out = []
        for p, it in zip(o.kv_sched, kvl):
            if p == pos: out += it
        return out
    emit(kv_items(-2))
    c0a, c0b = chunk_items(0); emit(c0a)
    I(f"s_add_u32 s6, s{S_WS}, {E_OFF}", f"s_addc_u32 s7, s{S_WS+1}, 0", f"s_load_dword s{sNON}, s[6:7], 0")
    emit(c0b[:2*o.c0q])
    emit(S[NPRE:max(NA, NPRE)])
    emit(kv_items(-1))
    c1a, c1b = chunk_items(1)
    SB = S[max(NA, NPRE):] + ["s_waitcnt lgkmcnt(0)", f"s_mul_i32 s{sNON}, s{sNON}, 1664525", f"s_add_u32 s{sNON}, s{sNON}, 1013904223", f"v_mov_b32 v{vNON}, s{sNON}"]
    assert o.sb_pre >= len(SB) or not SB[o.sb_pre].startswith(('s_addc', 's_cselect'))
    emit(SB[:o.sb_pre]); SB = SB[o.sb_pre:]
    emit(c0b[2*o.c0q:])
    stamp("setup")

    def flag_items(sreg):
        return ["s_mov_b64 exec, 1", lambda: g.vm(f"buffer_store_dword v{vNON}, off, {sr(S_WS,4)}, s{sreg} sc1"), "s_mov_b64 exec, -1"]
    def flag_store(sreg): emit(flag_items(sreg))
    def poll_issue(sreg, va):
        return g.vm(f"buffer_load_dword v{vFL}, v{va}, {sr(S_WS,4)}, s{sreg} offen sc1")
    def poll_check(tok, sreg, va, pend=None):
        ok, lp, sl = g.label("LOK"), g.label("LPOLL"), g.label("LSLOW")
        g.wait(vm=tok)
        I(f"v_cmp_ne_u32 vcc, s{sNON}, v{vFL}", "s_nop 1", f"s_cbranch_vccnz {sl}", f"{ok}:")
        cold_code.extend([f"{sl}:", f"s_mov_b32 s{sSPIN}, 400000"])
        if pend is not None:
            cold_code.extend(["s_waitcnt vmcnt(0)", "s_mov_b64 exec, 1", f"buffer_store_dword v{vNON}, off, {sr(S_WS,4)}, s{pend} sc1", "s_mov_b64 exec, -1"])
        cold_code.extend([
          f"{lp}:", f"buffer_load_dword v{vFL}, v{va}, {sr(S_WS,4)}, s{sreg} offen sc1", f"s_sub_u32 s{sSPIN}, s{sSPIN}, 1", "s_waitcnt vmcnt(0)",
          f"s_cbranch_scc1 {ok}", f"v_cmp_ne_u32 vcc, s{sNON}, v{vFL}", "s_nop 1", f"s_cbranch_vccnz {lp}", f"s_branch {ok}"])

    order29 = [35, 36, 37, 38, 39, 0, 1, 2, 20, 21, 22, 23, 3, 4, 5, 12, 13, 14, 15, 6, 7, 8, 16, 17, 18, 19, 9, 10, 11]
    NHELD = 14
    slot_unit = order29 + order29[:NHELD]
    aW2, aH, NHR = 0, 8 * NHELD, o.nhr
    assert aH + 4 * NHR <= 256
    w2_next = [0]; tok_w2 = {}
    def w2_items(cnt, avail=99):
        out = []
        for _ in range(cnt):
            n = w2_next[0]
            assert n < avail, (n, avail)
            w2_next[0] += 1
            out.append(f"s_add_u32 m0, s{sWK}, {slot_unit[n]*4096}")
            m = n - 3
            def f(n=n, m=m): tok_w2[n] = g.vm(f"buffer_load_dwordx4 v{vW2G+(n if m < 0 else m%4)}, {sr(S_W2,4)}, s{sW2E if m < 0 else sW2O} offen lds")
            out.append(f)
            if m >= 0 and m % 4 == 3 and m < 39:
                out += [f"s_add_u32 s{sW2O}, s{sW2O}, 65536", f"s_cmp_ge_u32 s{sW2O}, s{sW2E}", f"s_cselect_b32 s{sW2O}, s{sW2S}, s{sW2O}"]
        return out
    trd = {}
    def w2_read_items(n, dst, kind):
        u = slot_unit[n]; win = min(u // 12, 2); base = u - 12 * win; out = []
        for tl in range(2):
            for hh in range(2):
                def f(tl=tl, hh=hh): trd[(n, tl)] = g.ds(f"ds_read_b64_tr_b16 {vr(dst+4*tl+2*hh,2,kind)}, v{vW2R+2*win+tl} offset:{base*4096+hh*1024}")
                out.append(f)
        return out
    def held_items(n): return w2_read_items(n, aW2 + 8 * n, "a")
    def glue(items):
        out = []; i = 0
        while i < len(items):
            x = items[i]
            if isinstance(x, str) and x.startswith("s_cmp"):
                y = items[i + 1]; out.append(lambda x=x, y=y: I(x, y)); i += 2
            elif isinstance(x, str) and x.startswith("s_mov_b64 exec, 1"):
                y, z = items[i + 1], items[i + 2]; out.append(lambda x=x, y=y, z=z: (I(x), y(), I(z))); i += 3
            else:
                out.append(x); i += 1
        return out

    tw = {}
    def w1_read_items(n):
        i, j = divmod(n, 4); b = aWF + 12 * (n % 3); out = []
        for u in range(3):
            for hh in range(2):
                def f(u=u, hh=hh): tw[(n, u)] = g.ds(f"ds_read_b64_tr_b16 {ar(b+4*u+2*hh,2)}, v{vW1R+j} offset:{(i%4)*12288+u*1024+hh*256}")
                out.append(f)
        return out
    tq = {}
    def q_read_items(i):
        out = []
        for k in range(4):
            def f(k=k): tq[(i, k)] = g.ds(f"ds_read_b128 {vr(vQF+16*(i%2)+4*k,4)}, v{vQR+k} offset:{(i%3)*16384}")
            out.append(f)
        return out
    rq, dq, fq = Q(), Q(), Q()
    def step(n, rmax=2, dmax=2):
        i, j = divmod(n, 4); b = aWF + 12 * (n % 3); q = vQF + 16 * (i % 2) + 4 * j
        for u in range(3):
            g.wait(ds=max(tw[(n, u)], tq[(i, j)]))
            c = "0" if n == 0 else vr(vACC+16*u, 16)
            I(f"v_mfma_f32_32x32x16_bf16 {vr(vACC+16*u,16)}, {ar(b+4*u,4)}, {vr(q,4)}, {c}")
            dq.pop(1); gap(4, (rq, rmax), (dq, dmax - 1), (fq, 4))
        c = "0" if n == 0 else vr(vSUM, 4)
        if not (i == 7 and j > 0):
            for jj in (range(4) if i == 7 else [j]):
                qq = vQF + 16 * (i % 2) + 4 * jj
                I(f"v_mfma_f32_16x16x32_bf16 {vr(vSUM,4)}, {vr(vMASK,4)}, {vr(qq,4)}, {c}")
                gap(2, (rq, 1), (dq, 1), (fq, 2))
        if j == 0:
            for u in range(3):
                c = "0" if n == 0 else vr(vCS+4*u, 4)
                I(f"v_mfma_f32_16x16x32_bf16 {vr(vCS+4*u,4)}, {vr(vMASK,4)}, {ar(b+4*u,4)}, {c}")
                gap(2, (rq, 1), (dq, 1), (fq, 2))
    def dot_batch(i):
        for k in range(16):
            q = vQF + 16 * (i % 2) + k
            I(f"v_dot2_f32_bf16 v{vSQ+k%4}, v{q}, v{q}, v{vSQ+k%4}")
    vSS = vS
    vCP = vS + 12
    vPK = vX + 10
    KB = o.kv_blk
    def kv_block(mid=()):
        vK, vV, vO, vKS = vX, vX+10, vX+18, vX+28
        vWA, vWB = vS+2, vS+3
        g.wait(vm=tok["kv"])
        stamp("kv_landed")
        emit(mid)
        tk = [g.ds(f"ds_read_b64_tr_b16 {vr(vK+2*j,2)}, v{pKTR} offset:{512+512*j}") for j in range(5)]
        tv = [g.ds(f"ds_read_b64_tr_b16 {vr(vV+2*j,2)}, v{pKTR} offset:{3072+512*j}") for j in range(4)]
        I(f"v_alignbit_b32 v{vWA}, v{vWT}, v{vWT}, 16", f"v_alignbit_b32 v{vWB}, v{vWT+1}, v{vWT+1}, 16")
        g.wait(ds=tk[4])
        for j in range(9): I(f"v_alignbit_b32 v{vO+j}, v{vK+j+1}, v{vK+j}, 16")
        for a in range(8):
            I(f"v_dot2_f32_bf16 v{vKS+2*a}, v{vO+a}, v{vWB}, 0", f"v_dot2_f32_bf16 v{vKS+2*a+1}, v{vK+a+1}, v{vWB}, 0")
        for a in range(8):
            I(f"v_dot2_f32_bf16 v{vKS+2*a}, v{vO+a+1}, v{vWA}, v{vKS+2*a}", f"v_dot2_f32_bf16 v{vKS+2*a+1}, v{vK+a+2}, v{vWA}, v{vKS+2*a+1}")
        g.wait(ds=tv[3])
        vf = [vK + 2*a for a in range(4)] + [vO + 2*a for a in range(4)]
        for a in range(8):
            I(f"v_lshlrev_b32 v{vf[a]}, 16, v{vV+a}", f"v_and_b32 v{vf[a]+1}, 0xffff0000, v{vV+a}")
        for a in range(8):
            I(f"v_pk_mul_f32 {vr(vKS+2*a,2)}, {vr(vKS+2*a,2)}, {vr(vf[a],2)}")
        for j in range(8):
            I(f"v_cvt_pk_bf16_f32 v{vPK+j}, v{vKS+15-2*j}, v{vKS+14-2*j}")
        g.ds(f"ds_write_b128 v{pKSW}, {vr(vPK,4)}"); g.ds(f"ds_write_b128 v{pKSW}, {vr(vPK+4,4)} offset:16")
        stamp("kv_done")
    flagA_done = False
    assert KB == -1
    I("s_waitcnt lgkmcnt(0)")
    kv_block(c1a); c1a = []
    g.wait(ds=g.nds-1); I("s_barrier")
    g.ds(f"ds_read_b128 {vr(vPK,4)}, v{pKSR}"); tkr = g.ds(f"ds_read_b128 {vr(vPK+4,4)}, v{pKSR} offset:{8*144}")
    emit(c1b); c1b = []
    g.wait(ds=tkr)
    g.vm(f"buffer_store_dwordx4 {vr(vPK,4)}, v{pKG0}, {sr(S_WS,4)}, s{sKVS} offen sc1")
    tok["kvst"] = g.vm(f"buffer_store_dwordx4 {vr(vPK+4,4)}, v{pKG1}, {sr(S_WS,4)}, s{sKVS} offen sc1")
    emit(SB)
    stamp("setup2")
    for i in range(9):
        if i <= 7: g.wait(vm=tok_chunk[i], ds=g.nds-1)
        else: g.wait(ds=g.nds-1)
        I("s_barrier")
        stamp(f"it{i}")
        pre, post = kv_items(i), []
        if i == 0:
            a, b = chunk_items(2); pre += c1a + c1b + a + b
        if i + 3 <= 7:
            a, b = chunk_items(i + 3); pre += a; post += b
            if o.w2_early[i]: post += w2_items(o.w2_early[i], 5)
        else:
            cnt = o.w2_pace[i - 5]; av = 7 * (i - 5) + 8
            k = max(0, min(cnt, av - w2_next[0], (cnt + 1) // 2))
            pre += w2_items(k, av)
            if i <= 7: post += w2_items(cnt - k, av + 4)
            else: pre += w2_items(cnt - k, av)
        if i == o.flaga_at:
            g.wait(vm=tok["kvst"]); pre = flag_items(sFA) + pre
        if i == o.ssm_at:
            sl = [lambda: g.vm(f"buffer_load_dwordx2 {vr(vSS+2,2)}, off, {sr(S_SSM,4)}, 0"),
                  lambda: g.vm(f"global_load_dword v{pD}, v{pD}, {sr(sPD,2)}")]
            for k in range(2):
                for c in range(4):
                    sl.append(f"s_add_u32 m0, s{sZP}, {c*CSTR+32}")
                    def f(k=k, c=c): tok["ssm"] = g.vm(f"buffer_load_dwordx4 v{pSSM}, {sr(S_SSM,4)}, {2*c} offen offset:{1024*k} lds")
                    sl.append(f)
            ssm_parts = {i: sl[:2]}
            for idx, pos in zip([0, 4, 2, 6, 1, 5, 3, 7], o.ssm_pos):
                ssm_parts.setdefault(pos, []).extend(sl[2+2*idx:4+2*idx])
        if i >= o.ssm_at and i in ssm_parts: pre = ssm_parts[i] + pre
        if i == o.polla_at:
            def pa(): tok["pollA"] = poll_issue(sPA, vF1)
            pre = [pa] + pre
        if i <= 7:
            rq.add(*q_read_items(i)); rq.add(*w1_read_items(4 * i))
        else:
            tcs = {}
            for u in range(3):
                def f(u=u): tcs[u] = g.ds(f"ds_read_b128 {vr(vCS+4*u,4)}, v{pCSR} offset:{u*512}")
                rq.add(f)
        dq.add(*glue(pre))
        if i > 0:
            step(4 * i - 2, rmax=3); rq.flush()
            if i <= 7: rq.add(*w1_read_items(4 * i + 1))
            step(4 * i - 1); rq.flush()
        else:
            rq.flush(); rq.add(*w1_read_items(1)); rq.flush(); dq.pop(8)
        if i == 8: break
        rq.add(*w1_read_items(4 * i + 2))
        g.wait(ds=tq[(i, 3)])
        dq.add(*glue(post))
        step(4 * i); rq.flush()
        rq.add(*w1_read_items(4 * i + 3))
        if i == 7:
            fq.flush()
            fq.add(f"v_and_b32 v{t0}, 16, v{vL}", f"v_cmp_ne_u32 vcc, 0, v{t0}")
            for u in range(3):
                fq.add(f"v_cndmask_b32 v{t3}, v{vCS+4*u}, v{vCS+4*u+1}, vcc", f"v_cvt_pk_bf16_f32 v{t4}, v{t3}, v{t3}", f"v_lshlrev_b32 v{t4}, 16, v{t4}",
                       f"v_sub_f32 v{t3}, v{t3}, v{t4}", f"v_cvt_pk_bf16_f32 v{vCS+4*u+2}, v{t4}, v{t3}",
                       lambda u=u: g.ds(f"ds_write_b32 v{pCSW}, v{vCS+4*u+2} offset:{u*512}"))
        step(4 * i + 1); rq.flush()
        if i == 7: fq.flush()
        dot_batch(i)
        while i + o.mind <= 7 and (i + o.mind) not in tok_chunk: dq.pop(1)
        if i >= o.flush_from: dq.flush()
        if i == KB: kv_block()
        if i == 7:
            I(f"v_cndmask_b32 v{t0}, v{vSUM}, v{vSUM+1}, vcc",
              f"v_add_f32 v{vSQ}, v{vSQ}, v{vSQ+1}", f"v_add_f32 v{vSQ+2}, v{vSQ+2}, v{vSQ+3}", f"v_mul_f32 v{t0}, 0x3b000000, v{t0}", f"v_add_f32 v{vSQ}, v{vSQ}, v{vSQ+2}", f"v_mov_b32 v{vSQ+1}, v{vSQ}")
            fq.add(f"v_permlane32_swap_b32 v{vSQ}, v{vSQ+1}", f"v_add_f32 v{vSQ}, v{vSQ}, v{vSQ+1}", f"v_mul_f32 v{vSQ}, 0x3b000000, v{vSQ}",
              f"v_fma_f32 v{vSQ}, -v{t0}, v{t0}, v{vSQ}", f"v_max_f32 v{vSQ}, 0, v{vSQ}",
              f"v_cvt_pk_bf16_f32 v{t3}, v{t0}, v{vSQ}",
              f"v_lshlrev_b32 v{t0}, 16, v{t3}", f"v_and_b32 v{t4}, 0xffff0000, v{t3}",
              f"v_cvt_pk_bf16_f32 v{t3}, -v{t0}, -v{t0}", f"v_cmp_gt_u32 vcc, 32, v{vL}",
              f"v_add_f32 v{t4}, 0x3727c5ac, v{t4}", f"v_cvt_pk_bf16_f32 v{t4}, v{t4}, v{t4}",
              f"v_cndmask_b32 v{vSUM}, 0, v{t3}, vcc", f"v_mov_b32 v{vSUM+1}, v{vSUM}", f"v_mov_b32 v{vSUM+2}, v{vSUM}", f"v_mov_b32 v{vSUM+3}, v{vSUM}",
              "MARK",
              f"v_lshlrev_b32 v{t4}, 16, v{t4}", f"v_sqrt_f32 v{t4}, v{t4}", f"v_cvt_pk_bf16_f32 v{t4}, v{t4}, v{t4}", f"v_lshlrev_b32 v{vSD}, 16, v{t4}", f"v_mov_b32 v{vSD+1}, v{vSD}",
              f"v_rcp_f32 v{t1}, v{vSD}", f"v_mul_f32 v{vC1}, 0xbfb8aa3b, v{t1}", f"v_mov_b32 v{vC1+1}, v{vC1}",
              lambda: g.ds(f"ds_write_b64 v{pSTW}, {vr(t0,2)}"))
    while "MARK" in fq.q: fq.pop(1)
    g.wait(ds=tcs[2])
    for u in range(3):
        I(f"v_mfma_f32_32x32x16_bf16 {vr(vACC+16*u,16)}, {vr(vCS+4*u,4)}, {vr(vSUM,4)}, {vr(vACC+16*u,16)}")
        gap(5, (fq, 5), (dq, 5))
    dq.flush(); fq.flush()
    g.L = [x for x in g.L if x != "MARK"]
    vKT = vQF
    def kvt_load():
        poll_check(tok["pollA"], sPA, vF1, sFB if o.kvt_at == 3 else None)
        g.vm(f"buffer_load_dwordx4 {vr(vKT,4)}, v{vL16}, {sr(S_WS,4)}, s{sKVL} offen sc1")
        tok["kvt"] = g.vm(f"buffer_load_dwordx4 {vr(vKT+4,4)}, v{vL16}, {sr(S_WS,4)}, s{sKVL} offen offset:1024 sc1")
        stamp("pollA")
    vE = vQF + 16
    vHP = vX
    for u in range(3):
        if o.polla_at == 9 + u: tok["pollA"] = poll_issue(sPA, vF1)
        if o.kvt_at == u: kvt_load()
        a = vACC + 16 * u; p = vHP + 8 * u
        dq.add(*ssm_parts.get(9 + u, [])); dq.add(*glue(w2_items(o.w2_pace[4 + u], 29)))
        for k in range(8): I(f"v_pk_mul_f32 {vr(vE+2*k,2)}, {vr(a+2*k,2)}, {vr(vC1,2)}")
        for k in range(16):
            I(f"v_exp_f32 v{vE+k}, v{vE+k}")
            if k % 4 == 1: dq.pop(1)
        for k in range(8): I(f"v_pk_fma_f32 {vr(vE+2*k,2)}, {vr(vE+2*k,2)}, {vr(vSD,2)}, {vr(vSD,2)}")
        for k in range(16):
            I(f"v_rcp_f32 v{vE+k}, v{vE+k}")
            if k % 4 == 1: dq.pop(1)
        dq.flush()
        for k in range(8): I(f"v_pk_mul_f32 {vr(vE+2*k,2)}, {vr(vE+2*k,2)}, {vr(a+2*k,2)}")
        for kk in range(2):
            for k in range(4): I(f"v_cvt_pk_bf16_f32 v{p+4*kk+k}, v{vE+8*kk+2*k}, v{vE+8*kk+2*k+1}")
            if u < 2: tok["hst"] = g.vm(f"buffer_store_dwordx4 {vr(p+4*kk,4)}, v{vL16}, {sr(S_WS,4)}, s{sHST} offen offset:{(2*u+kk)*1024} sc1")
            else: tok["hst"] = g.vm(f"buffer_store_dwordx4 {vr(p+4*kk,4)}, v{vL16}, {sr(S_WSU,4)}, s{sHST2} offen offset:{kk*1024} sc1")
    stamp("silu")
    if o.kvt_at == 3: kvt_load()
    g.wait(vm=tok["ssm"])
    I(f"v_lshlrev_b32 v{t0}, 3, v{vL}", f"v_and_b32 v{t0}, 48, v{t0}", f"v_sub_u32 v{t0}, 48, v{t0}", f"v_lshlrev_b64 {vr(vSS+2,2)}, v{t0}, {vr(vSS+2,2)}",
      f"v_and_b32 v{t1}, 57, v{vL}", f"v_cmp_eq_u32 vcc, 1, v{t1}", f"v_lshlrev_b64 {vr(vSS+2,2)}, 16, {vr(vSS+2,2)}",
      f"v_mov_b32 v{vSS}, 0", f"v_mov_b32 v{vSS+1}, 0", f"v_cndmask_b32 v{vSS+2}, 0, v{vSS+2}, vcc", f"v_cndmask_b32 v{vSS+3}, 0, v{vSS+3}, vcc",
      f"s_and_b32 s{sT0}, s{sCH}, 1", f"s_lshl_b32 s{sT0}, s{sT0}, 4", f"v_lshrrev_b32 v{pD}, s{sT0}, v{pD}", f"v_lshlrev_b32 v{pD}, 16, v{pD}")
    I("s_mov_b32 exec_hi, 63")
    g.ds(f"ds_write_b128 v{pZW}, {vr(vSS,4)}")
    I("s_mov_b32 exec_hi, -1")
    g.wait(vm=tok["kvt"])
    flagB_done = False
    def try_flagB(force=False):
        nonlocal flagB_done
        if not flagB_done and (force or g.vm_done >= tok["hst"]):
            g.wait(vm=tok["hst"]); flag_store(sFB); flagB_done = True; stamp("flagB")
    g.ds(f"ds_write_b128 v{pUW}, {vr(vKT,4)}")
    g.ds(f"ds_write_b128 v{pUW}, {vr(vKT+4,4)} offset:1024")
    try_flagB(o.flagb_at == (-1, 0))
    assert sum(o.held) == NHELD
    g.wait(vm=tok_w2[NHELD-1], ds=g.nds-1); I("s_barrier")
    stamp("Bb")
    vY = vACC
    vFR = 96
    tcv = {}
    def conv_read_items(st):
        b = vFR + 64 * (st % 2); out = []
        def fa(a, hh): tcv[(st, "a", a)] = g.ds(f"ds_read_b64 {vr(b+4*a+2*hh,2)}, v{pA} offset:{64*st+512*a+8*hh}")
        def fb(a): tcv[(st, "b", a)] = g.ds(f"ds_read_b128 {vr(b+32+4*a,4)}, v{pB} offset:{512*(7-a)+64*st}")
        out += [lambda: fa(0, 0), lambda: fa(0, 1)]
        for a in range(8): out.append(lambda a=a: fb(a))
        for a in range(1, 8): out += [lambda a=a: fa(a, 0), lambda a=a: fa(a, 1)]
        return out
    rq.add(*conv_read_items(0)); rq.pop(12)
    tok_h = {}; h_next = [0]
    def h_items(cnt):
        out = []
        for _ in range(cnt):
            n = h_next[0]
            if n >= 43: break
            h_next[0] += 1
            m = n - 3
            def f(n=n, m=m): tok_h[n] = g.vm(f"buffer_load_dwordx4 {ar(aH+4*(n%NHR),4)}, v{vL16}, {sr(S_WS,4)}, s{sHE if m < 0 else sHO} offen offset:{(n if m < 0 else m%4)*1024} sc1")
            out.append(f)
            if m >= 0 and m % 4 == 3 and m < 39:
                out += [f"s_add_u32 s{sHO}, s{sHO}, 4096", f"s_cmp_ge_u32 s{sHO}, s{sHE}", f"s_cselect_b32 s{sHO}, s{sHS}, s{sHO}"]
        return out
    pollB_checked = False
    hq = Q(); since = 99
    for st in range(4):
        b = vFR + 64 * (st % 2)
        if st < 3: rq.add(*conv_read_items(st + 1))
        if st == 0:
            late = glue(w2_items(29 - w2_next[0], 29))
            if flagB_done: dq.add(*late); late = []
        for n in range(sum(o.held[:st]), sum(o.held[:st+1])): fq.add(*held_items(n))
        if st == 3: dq.add(*glue(w2_items(sum(o.held[:3]))))
        if st == 3:
            for k in range(4):
                def f(k=k): tok["u"] = g.ds(f"ds_read_b64 {vr(vFR+2*k,2)}, v{pUR} offset:{1536-512*k}")
                rq.add(f)
        pairs = sorted((a, s - a) for s in range(8) for a in range(s + 1))
        first = set()
        nds_total = len(rq) + len(fq)
        for idx, (a, bb) in enumerate(pairs):
            acc = vY + 4 * (a + bb)
            c = "0" if (st == 0 and (a + bb) not in first) else vr(acc, 4)
            first.add(a + bb)
            g.wait(ds=max(tcv[(st, "a", a)], tcv[(st, "b", bb)]))
            I(f"v_mfma_f32_16x16x32_bf16 {vr(acc,4)}, {vr(b+4*a,4)}, {vr(b+32+4*bb,4)}, {c}")
            left = 36 - idx
            want = -(-(len(rq) + len(fq)) // left)
            k = rq.pop(1)
            if want > k: fq.pop(want - k) or rq.pop(want - k)
            for q_ in (hq, dq):
                if len(q_):
                    n0 = g.nvm
                    if isinstance(q_.q[0], str) or since >= o.dgap:
                        q_.pop(1)
                        if g.nvm > n0: since = 0
                    break
            since += 1
            if (st, idx) == o.flagb_at:
                try_flagB(True); dq.add(*late); late = []
            if (st, idx) == o.pollb_at: tp = poll_issue(sPB, vF2)
            if (st, idx) == o.chkb_at:
                poll_check(tp, sPB, vF2); pollB_checked = True; stamp("pollB")
                hq.add(*glue(h_items(o.h_early)))
        rq.flush(); fq.flush()
        if st == 3: dq.flush()
        if st == 0: assert not late
        if st == 2:
            g.wait(ds=g.nds-1); I("s_barrier")
    assert flagB_done
    stamp("conv")
    vU = vFR; vUF = vFR + 8; vYK = vFR + 24
    tu = [tok["u"]] * 4
    if o.chkb_at == (4, 0):
        poll_check(tp, sPB, vF2); pollB_checked = True; stamp("pollB")
        emit(h_items(o.h_early))
    lo, lj = g.label("LO"), g.label("LJ")
    g.wait(ds=tu[3])
    for k in range(4):
        I(f"v_and_b32 v{vUF+4*k}, 0xffff0000, v{vU+2*k+1}", f"v_lshlrev_b32 v{vUF+4*k+1}, 16, v{vU+2*k+1}",
          f"v_and_b32 v{vUF+4*k+2}, 0xffff0000, v{vU+2*k}", f"v_lshlrev_b32 v{vUF+4*k+3}, 16, v{vU+2*k}")
    hq.pop(1)
    I(f"s_cmp_lg_u32 s{sW0b}, 0", f"s_cbranch_scc1 {lo}")
    sv = (g.nds, g.ds_done)
    for par in range(2):
        g.nds, g.ds_done = sv
        keep, send = (vY, vY + 16) if par == 0 else (vY + 16, vY)
        for k in range(4):
            g.ds(f"ds_write_b128 v{pEXW}, {vr(send+4*k,4)} offset:{k*1024}")
            for j in range(4): I(f"v_fma_f32 v{vYK+4*k+j}, v{vUF+4*k+j}, v{pD}, v{keep+4*k+j}")
        if par == 0: I(f"s_branch {lj}", f"{lo}:")
    I(f"{lj}:")
    hq.pop(2)
    g.wait(ds=g.nds-1); I("s_barrier")
    vYX = vFR + 40
    tx = [g.ds(f"ds_read_b128 {vr(vYX+4*k,4)}, v{pEXR} offset:{k*1024}") for k in range(4)]
    vYP = vFR + 56
    if not pollB_checked: emit(w2_items(43 - w2_next[0]))
    hq.pop(2)
    for pr in range(2):
        g.wait(ds=tx[2*pr+1])
        for k in range(4): I(f"v_pk_add_f32 {vr(vYK+8*pr+2*k,2)}, {vr(vYK+8*pr+2*k,2)}, {vr(vYX+8*pr+2*k,2)}")
        for k in range(4): I(f"v_cvt_pk_bf16_f32 v{vYP+4*pr+k}, v{vYK+8*pr+2*k}, v{vYK+8*pr+2*k+1}")
        I(f"v_permlane16_swap_b32 v{vYP+4*pr}, v{vYP+4*pr+2}", f"v_permlane16_swap_b32 v{vYP+4*pr+1}, v{vYP+4*pr+3}")
        tok["yst"] = g.vm(f"buffer_store_dwordx4 {vr(vYP+4*pr,4)}, v{pYS}, {sr(S_WS,4)}, s{sYS} offen offset:{pr*1024} sc1")
    stamp("yst")
    if not pollB_checked:
        poll_check(tp, sPB, vF2, sFC); stamp("pollB")
    vO2 = vACC
    vW2F = 96
    vYL, vXR, vST, vXF, vXN, vYV = 120, 128, 136, 144, 160, 176
    g.vm(f"buffer_load_dwordx4 {vr(vXR,4)}, v{pYG0}, {sr(S_Q,4)}, s{sTILE} offen")
    tok["x"] = g.vm(f"buffer_load_dwordx4 {vr(vXR+4,4)}, v{pYG1}, {sr(S_Q,4)}, s{sTILE} offen")
    g.ds(f"ds_read_b64 {vr(vST,2)}, v{pSTR}"); tst = g.ds(f"ds_read_b64 {vr(vST+2,2)}, v{pSTR} offset:64")
    hq.flush()
    emit(h_items(max(0, o.h_pre - h_next[0])))
    flagc_done = False; xdone = False; ywr = False
    if o.flagc_at < 0:
        g.wait(vm=tok["yst"]); flag_store(sFC); flagc_done = True; stamp("flagC")
    for n in range(43):
        if NHELD <= n + 2 < 43: rq.add(*w2_read_items(n + 2, vW2F + 8 * ((n + 2) % 3), "v"))
        room = n + NHR - h_next[0]
        dq.add(*glue(h_items(min(room, o.hrate_[0] if n < o.hrate_[1] else 1))))
        if w2_next[0] < 43: dq.add(*glue(w2_items(1)))
        for tl in range(2):
            g.wait(vm=tok_h[n], ds=trd.get((n, tl)) if n >= NHELD else None)
            a = ar(aW2 + 8 * n + 4 * tl, 4) if n < NHELD else vr(vW2F + 8 * (n % 3) + 4 * tl, 4)
            c = "0" if n == 0 else vr(vO2 + 16 * tl, 16)
            I(f"v_mfma_f32_32x32x16_bf16 {vr(vO2+16*tl,16)}, {a}, {ar(aH+4*(n%NHR),4)}, {c}")
            gap(5, (rq, 2), (dq, 2), (fq, 5))
        rq.flush(); dq.flush()
        if not flagc_done and (g.vm_done >= tok["yst"] or n == o.flagc_at):
            g.wait(vm=tok["yst"]); flag_store(sFC); flagc_done = True; stamp("flagC")
        if not xdone and g.vm_done >= tok["x"]:
            xdone = True; g.wait(ds=tst)
            for i in range(2): fq.add(f"v_mul_f32 v{vST+4+i}, v{vST+2*i}, v{vST+2*i+1}")
            for k in range(8): fq.add(f"v_lshlrev_b32 v{vXF+2*k}, 16, v{vXR+k}", f"v_and_b32 v{vXF+2*k+1}, 0xffff0000, v{vXR+k}")
            for k in range(16): fq.add(f"v_fma_f32 v{vXN+k}, v{vXF+k}, v{vST+2*(k//8)+1}, -v{vST+4+k//8}")
            for k in range(16): fq.add(f"v_mov_b32 v{vYV+k}, 0")
        if n == 26:
            g.wait(vm=tok_w2[42]); I("s_barrier")
        if n == NHELD - 4:
            le, lb = g.label("LE"), g.label("LB")
            I("s_cmp_eq_u32 s2, 0", f"s_cbranch_scc1 {le}", f"{lb}:")
            save = g.L; g.L = []
            I(f"{le}:", f"v_lshrrev_b32 v{t0}, 5, v{vL}", f"v_lshlrev_b32 v{t0}, 14, v{t0}", f"v_and_b32 v{t1}, 31, v{vL}", f"v_lshl_add_u32 v{t0}, v{t1}, 7, v{t0}",
              f"s_lshl_b32 s{sT0}, s{sW}, 15", f"s_add_u32 s{sT1}, s{sT0}, {FA_OFF}", f"v_not_b32 v{vFL}, v{vNON}")
            svm = g.vm_done; poll_check(g.vm_done, sT1, t0); g.vm_done = svm
            I(f"s_branch {lb}")
            cold_code.extend(g.L); g.L = save
            g.wait(vm=tok_w2[28]); I("s_barrier")
            le2, lb2 = g.label("LE"), g.label("LB")
            I(f"s_or_b32 s{sT0}, s2, s{sW}", f"s_cbranch_scc0 {le2}", f"{lb2}:")
            cold_code.extend([f"{le2}:", f"s_mov_b32 s{sT1}, {E_OFF}", "s_mov_b64 exec, 1",
              f"buffer_store_dword v{vNON}, off, {sr(S_WS,4)}, s{sT1} sc1", "s_mov_b64 exec, -1", f"s_branch {lb2}"])
        if n in (0, 8, 16, 24, 32): stamp(f"n{n}")
        if n == o.pollc_at:
            tpc = poll_issue(sPC, vF2)
        if n == o.ychk_at:
            poll_check(tpc, sPC, vF2)
            g.vm(f"buffer_load_dwordx4 {vr(vYL,4)}, v{pKG0}, {sr(S_WS,4)}, s{sYL} offen sc1")
            ty = g.vm(f"buffer_load_dwordx4 {vr(vYL+4,4)}, v{pKG1}, {sr(S_WS,4)}, s{sYL} offen sc1")
            stamp("pollC")
        if n == o.ywr_at:
            g.wait(vm=ty)
            g.ds(f"ds_write_b128 v{pYW0}, {vr(vYL,4)}"); tyw = g.ds(f"ds_write_b128 v{pYW1}, {vr(vYL+4,4)} offset:1024")
        if n == o.ywr_at + 1:
            fq.flush(); g.wait(ds=tyw); I("s_barrier"); ywr = True
            for i in range(2):
                for j in range(8):
                    def f(i=i, j=j): tok["yv"] = g.ds(f"ds_read_u16_d16_hi v{vYV+8*i+j}, v{pYR0+i} offset:{j*128}")
                    fq.add(f)
            fq.add(lambda: g.wait(ds=tok["yv"]))
            for k in range(16): fq.add(f"v_fmac_f32 v{vXF+k}, v{vXN+k}, v{vYV+k}")
    fq.flush()
    stamp("gemm2")
    for q in range(4): g.ds(f"ds_write_b128 v{pPW}, {vr(vO2+4*q,4)} offset:{32*q}")
    for q in range(4): g.ds(f"ds_write_b128 v{pPW1}, {vr(vO2+16+4*q,4)} offset:{32*q}")
    if not ywr:
        g.wait(vm=ty)
        g.ds(f"ds_write_b128 v{pYW0}, {vr(vYL,4)}"); g.ds(f"ds_write_b128 v{pYW1}, {vr(vYL+4,4)} offset:1024")
    g.wait(ds=g.nds-1); I("s_barrier")
    stamp("fin_bar")
    vF0 = 64
    tf = {}
    for i in range(2):
        for j in range(8 if not ywr else 0): g.ds(f"ds_read_u16_d16_hi v{vYV+8*i+j}, v{pYR0+i} offset:{j*128}")
        for p in range(2):
            for h in range(2):
                tf[i] = g.ds(f"ds_read_b128 {vr(vF0+16*i+8*p+4*h,4)}, v{pFR} offset:{i*8*PSTR+p*64*PSTR+16*h}")
    for i in range(2):
        g.wait(ds=tf[i])
        for k in range(4 if not ywr else 0): I(f"v_pk_fma_f32 {vr(vXF+8*i+2*k,2)}, {vr(vXN+8*i+2*k,2)}, {vr(vYV+8*i+2*k,2)}, {vr(vXF+8*i+2*k,2)}")
        for k in range(4): I(f"v_pk_add_f32 {vr(vF0+16*i+2*k,2)}, {vr(vF0+16*i+2*k,2)}, {vr(vF0+16*i+8+2*k,2)}")
        for k in range(4): I(f"v_pk_add_f32 {vr(vF0+16*i+2*k,2)}, {vr(vF0+16*i+2*k,2)}, {vr(vXF+8*i+2*k,2)}")
        for k in range(4): I(f"v_cvt_pk_bf16_f32 v{vF0+32+4*i+k}, v{vF0+16*i+2*k}, v{vF0+16*i+2*k+1}")
        g.vm(f"buffer_store_dwordx4 {vr(vF0+32+4*i,4)}, v{pYG0+i}, {sr(S_OUT,4)}, s{sTILE} offen")
    finish()
    return g, stamp_regs

HEADER = open("cdna_kernels/" + NAME + ".s.ref").read().split("; Override launch")[0]

def render(o):
    g, names = gen(o)
    body = pad_hazards(g.L)
    out = [HEADER.rstrip("\n"), f"; @launch grid=(256,1,1) block=(256,1,1) lds={LDS_BYTES}",
           '.amdgcn_target "amdgcn-amd-amdhsa--gfx950"', ".text", f".globl {NAME}_kernel", ".p2align 8", f".type {NAME}_kernel,@function", f"{NAME}_kernel:"]
    out += [("" if l.endswith(":") else "    ") + l for l in body]
    out.append(f""".section .rodata,"a"
.p2align 6
.amdhsa_kernel {NAME}_kernel
  .amdhsa_next_free_vgpr 512
  .amdhsa_next_free_sgpr 102
  .amdhsa_accum_offset 256
  .amdhsa_group_segment_fixed_size 0
  .amdhsa_kernarg_size 96
  .amdhsa_user_sgpr_count 2
  .amdhsa_user_sgpr_kernarg_segment_ptr 1
  .amdhsa_system_sgpr_workgroup_id_x 1
.end_amdhsa_kernel""")
    return "\n".join(out) + "\n", names

def parse(argv=None):
    import argparse
    ap = argparse.ArgumentParser()
    ap.add_argument("-o", default="cdna_kernels/" + NAME + ".s")
    ap.add_argument("--stamps", action="store_true")
    ap.add_argument("--npre", type=int, default=30)
    ap.add_argument("--only", default="entry,it0,it4,it8,silu,conv,n0,gemm2,end")
    ap.add_argument("--kv", default="-2,-2,-2,-2,-2,-2")
    ap.add_argument("--kv_blk", type=int, default=-1)
    ap.add_argument("--G", type=int, default=4)
    ap.add_argument("--probe", type=int, default=0)
    ap.add_argument("--w2e", default="0,0,0,0,0")
    ap.add_argument("--ssmpos", default="4,4,5,5,5,6,7,8")
    ap.add_argument("--dgap", type=int, default=5)
    ap.add_argument("--hrate", default="2,4")
    ap.add_argument("--mind", type=int, default=2)
    ap.add_argument("--flush_from", type=int, default=3)
    ap.add_argument("--heldsp", default="0,3,3,8")
    ap.add_argument("--h_gap", type=int, default=3)
    ap.add_argument("--ywr", type=int, default=99)
    ap.add_argument("--c1_early", type=int, default=0)
    ap.add_argument("--flaga_at", type=int, default=2)
    ap.add_argument("--c0q", type=int, default=1)
    ap.add_argument("--sb_pre", type=int, default=999)
    ap.add_argument("--polla_at", type=int, default=6)
    ap.add_argument("--kvt_at", type=int, default=0)
    ap.add_argument("--ssm_at", type=int, default=4)
    ap.add_argument("--pace", default="3,4,3,3,2,0,0")
    ap.add_argument("--touch", type=int, default=0)
    ap.add_argument("--flagb", default="0,34")
    ap.add_argument("--pollb", default="3,30")
    ap.add_argument("--chkb", default="9,9")
    ap.add_argument("--h_early", type=int, default=12)
    ap.add_argument("--h_pre", type=int, default=8)
    ap.add_argument("--nhr", type=int, default=20)
    ap.add_argument("--flagc", type=int, default=-1)
    ap.add_argument("--pollc", type=int, default=26)
    ap.add_argument("--ychk", type=int, default=36)
    a = ap.parse_args(argv)
    T = lambda s: tuple(int(x) for x in s.split(","))
    a.flagb_at, a.pollb_at, a.chkb_at, a.kv_sched, a.w2_pace = T(a.flagb), T(a.pollb), T(a.chkb), T(a.kv), T(a.pace)
    a.flagc_at, a.pollc_at, a.ychk_at, a.ywr_at = a.flagc, a.pollc, a.ychk, a.ywr
    a.w2_early = T(a.w2e); a.held = T(a.heldsp); a.ssm_pos = T(a.ssmpos); a.hrate_ = T(a.hrate)
    return a

if __name__ == "__main__":
    a = parse()
    s, names = render(a)
    open(a.o, "w").write(s)
    if a.stamps: open(a.o + ".names", "w").write("\n".join(names))
```
